```python
import torch

def _softmax(x, axis=-1):
    return torch.softmax(x, dim=axis)
def _gelu(x):
    return torch.nn.functional.gelu(x, approximate="tanh")
def _silu(x):
    return torch.nn.functional.silu(x)
def _sigmoid(x):
    return torch.sigmoid(x)
def _layernorm(x, axis=-1, eps=1e-5):
    m = x.mean(dim=axis, keepdim=True)
    v = x.var(dim=axis, keepdim=True, unbiased=False)
    return (x - m) / torch.sqrt(v + eps)
def _scatter_add(tgt, idx, src, axis=0):
    return tgt.clone().index_add_(axis, idx, src)
def _segment_sum(src, seg, n):
    out = torch.zeros((n,) + src.shape[1:], dtype=src.dtype)
    return out.index_add_(0, seg, src)
def _pad(x, pw):
    flat = tuple(v for pair in reversed(pw) for v in pair)
    return torch.nn.functional.pad(x, flat)

kernel_name = 'sequential_preLN__grouped_kv_mqa__mixer_channel_mlp__prompt'

def setup_inputs():

    _w = (lambda a: (lambda t: t.to(torch.bfloat16) if t.is_floating_point() else t)(torch.as_tensor(a)))
    def _A_setup():
        B, S, D, H = 1, 2048, 640, 32
        Dh = D // H
        return {
            "x": _w((lambda *s: torch.randn(*s, dtype=torch.bfloat16) * 0.05)(B, S, D)),
            "wq": _w((lambda *s: torch.randn(*s, dtype=torch.bfloat16) * 0.05)(D, H * Dh)),
            "wk": _w((lambda *s: torch.randn(*s, dtype=torch.bfloat16) * 0.05)(D, Dh)),
            "wv": _w((lambda *s: torch.randn(*s, dtype=torch.bfloat16) * 0.05)(D, Dh)),
            "wo": _w((lambda *s: torch.randn(*s, dtype=torch.bfloat16) * 0.05)(H * Dh, D)),
        }
    _A_in = _A_setup()

    def _B_setup():
        B, S, D, F = 1, 2048, 640, 1728
        return {
            "x": _w((lambda *s: torch.randn(*s, dtype=torch.bfloat16) * 0.05)(B, S, D)),
            "w1": _w((lambda *s: torch.randn(*s, dtype=torch.bfloat16) * 3.2)(D, F) * (D ** -0.5)),
            "b1": _w((lambda *s: torch.randn(*s, dtype=torch.bfloat16) * 1.6)(F)),
            "w2": _w((lambda *s: torch.randn(*s, dtype=torch.bfloat16) * 0.2)(F, D) * (F ** -0.5)),
            "b2": _w((lambda *s: torch.randn(*s, dtype=torch.bfloat16) * 0.4)(D)),
        }
    _B_in = _B_setup()

    return {
        "A_x": _A_in["x"],
        "A_wq": _A_in["wq"],
        "A_wk": _A_in["wk"],
        "A_wv": _A_in["wv"],
        "A_wo": _A_in["wo"],
        "B_x": _B_in["x"],
        "B_w1": _B_in["w1"],
        "B_b1": _B_in["b1"],
        "B_w2": _B_in["w2"],
        "B_b2": _B_in["b2"],
    }

def reference(A_x, A_wq, A_wk, A_wv, A_wo, B_x, B_w1, B_b1, B_w2, B_b2):
    def _A_ref(x, wq, wk, wv, wo):
        B, S, D = x.shape
        H = 32
        Dh = D // H
        q = (lambda x, *d: x.permute(*d))((x @ wq).reshape(B, S, H, Dh), 0, 2, 1, 3)
        k = x @ wk
        v = x @ wv
        scores = torch.einsum("bhqd,bkd->bhqk", q, k) * (Dh ** -0.5)
        p = _softmax(scores, axis=-1)
        o = torch.einsum("bhqk,bkd->bhqd", p, v)
        return (lambda x, *d: x.permute(*d))(o, 0, 2, 1, 3).reshape(B, S, H * Dh) @ wo

    def _B_ref(x, w1, b1, w2, b2):
        y = _layernorm(x, axis=-1)
        h = _gelu(torch.einsum("bsd,df->bsf", y, w1) + b1)
        return torch.einsum("bsf,fd->bsd", h, w2) + b2

    x = A_x
    h = x + _A_ref(_layernorm(x, axis=-1), A_wq, A_wk, A_wv, A_wo)
    h2 = h + _B_ref(_layernorm(h, axis=-1), B_w1, B_b1, B_w2, B_b2)
    return h2
```

```python
import re

REG_RE = re.compile(r'(?<![\w.])([vas])(?:\[(\d+):(\d+)\]|(\d+))(?![\w])')

def regs_of(tok):
    tok = tok.strip()
    out = []
    for m in REG_RE.finditer(tok):
        k = m.group(1)
        if m.group(2) is not None:
            out += [(k, i) for i in range(int(m.group(2)), int(m.group(3)) + 1)]
        else:
            out.append((k, int(m.group(4))))
    if re.search(r'\bvcc\b', tok): out += [('s', 106), ('s', 107)]
    if re.search(r'\bvcc_lo\b', tok): out += [('s', 106)]
    if re.search(r'\bvcc_hi\b', tok): out += [('s', 107)]
    if re.search(r'\bexec\b', tok): out += [('s', 126), ('s', 127)]
    if re.search(r'\bm0\b', tok): out += [('s', 124)]
    return out

TRANS = ('v_exp_', 'v_log_', 'v_rcp_', 'v_rsq_', 'v_sqrt_', 'v_sin_', 'v_cos_')

def mfma_passes(op):
    if '_2b_' in op: return 16
    if '_4b_' in op: return 8
    if '_16b_' in op: return 2
    if '32x32x' in op: return 8
    if '16x16x' in op: return 4
    raise ValueError(op)

class Ins:
    __slots__ = ('text', 'op', 'cls', 'wr', 'rd', 'srcc', 'ab', 'passes', 'states', 'trans', 'dpp', 'storedata', 'lds_dma', 'dot')
    def __init__(self, text):
        self.text = text
        t = text.split(';')[0].strip()
        parts = t.split(None, 1)
        self.op = op = parts[0]
        rest = parts[1] if len(parts) > 1 else ''
        ops, depth, cur = [], 0, ''
        for ch in rest:
            if ch == '[': depth += 1
            if ch == ']': depth -= 1
            if ch == ',' and depth == 0:
                ops.append(cur); cur = ''
            else: cur += ch
        if cur.strip(): ops.append(cur)
        ops = [o.strip() for o in ops]
        self.wr, self.rd, self.srcc, self.ab = [], [], [], []
        self.passes = 0; self.states = 1; self.trans = False; self.dpp = False
        self.storedata = []; self.lds_dma = False; self.dot = False
        R = regs_of
        if op.startswith('v_mfma'):
            self.cls = 'mfma'; self.passes = mfma_passes(op)
            self.wr = R(ops[0]); self.ab = R(ops[1]) + R(ops[2]); self.srcc = R(ops[3].split()[0])
            self.rd = self.ab + self.srcc
        elif op.startswith('v_'):
            self.cls = 'valu'
            self.trans = op.startswith(TRANS)
            self.dot = op.startswith('v_dot')
            self.dpp = ('_dpp' in op) or any(k in rest for k in ('row_', 'quad_perm', 'wave_'))
            if op.startswith('v_nop'):
                pass
            elif op.startswith('v_permlane') and 'swap' in op:
                self.wr = R(ops[0]) + R(ops[1]); self.rd = list(self.wr)
            elif op.startswith(('v_add_co', 'v_sub_co', 'v_subrev_co', 'v_addc_co', 'v_subb_co', 'v_div_scale')):
                self.wr = R(ops[0]) + R(ops[1]); self.rd = sum((R(o) for o in ops[2:]), [])
            else:
                self.wr = R(ops[0]); self.rd = sum((R(o) for o in ops[1:]), [])
                if op.startswith(('v_fmac', 'v_dot2c', 'v_pk_fmac', 'v_writelane')) or 'UNUSED_PRESERVE' in rest or self.dpp:
                    self.rd += self.wr
                if op.startswith('v_cmpx'): self.wr += [('s', 126), ('s', 127)]
        elif op.startswith(('buffer_', 'global_', 'flat_', 'scratch_')):
            self.cls = 'vmem'
            islds = bool(re.search(r'\blds\b', rest)) or '_lds_' in op
            self.lds_dma = islds
            if op in ('buffer_wbl2', 'buffer_inv'):
                pass
            elif 'store' in op or 'atomic' in op:
                self.rd = sum((R(o) for o in ops), [])
                data = R(ops[0]) if op.startswith('buffer_') else R(ops[1])
                if 'x3' in op or 'x4' in op: self.storedata = data
                if 'atomic' in op and re.search(r'\bsc0\b', rest):
                    self.wr = R(ops[0])
            elif islds:
                self.rd = sum((R(o) for o in ops), []) + [('s', 124)]
            else:
                self.wr = R(ops[0]); self.rd = sum((R(o) for o in ops[1:]), [])
        elif op.startswith('ds_'):
            self.cls = 'ds'
            if op.startswith(('ds_read', 'ds_bpermute', 'ds_permute', 'ds_swizzle')) or '_rtn' in op:
                self.wr = R(ops[0]); self.rd = sum((R(o) for o in ops[1:]), [])
            else:
                self.rd = sum((R(o) for o in ops), [])
        elif op.startswith('s_'):
            self.cls = 'salu'
            if op == 's_nop': self.states = int(ops[0], 0) + 1
            elif op.startswith(('s_cmp', 's_cbranch', 's_branch', 's_waitcnt', 's_barrier', 's_endpgm', 's_setprio', 's_sleep', 's_bitcmp')):
                self.rd = sum((R(o) for o in ops), [])
            else:
                self.wr = R(ops[0]) if ops else []
                self.rd = sum((R(o) for o in ops[1:]), [])
                if 'saveexec' in op: self.wr += [('s', 126), ('s', 127)]
        else:
            raise ValueError('unknown instr ' + text)

def need_states(p, c):
    n = 0
    pw = set(p.wr)
    if p.cls == 'valu':
        vw = {r for r in pw if r[0] in 'va'}
        sw = {r for r in pw if r[0] == 's'}
        if c.cls == 'mfma' and vw & set(c.rd): n = max(n, 3 if p.dot else 2)
        if c.cls == 'mfma' and (('s', 126) in sw): n = max(n, 4)
        if c.cls == 'valu':
            crd = set(c.rd)
            if p.trans and not c.trans and vw & crd: n = max(n, 1)
            if p.trans and c.trans and vw & crd: n = max(n, 1)
            if c.op.startswith(('v_readlane', 'v_readfirstlane')) and vw & crd: n = max(n, 1)
            if c.op.startswith('v_permlane') and vw & crd: n = max(n, 2)
            if c.dpp and vw & crd: n = max(n, 2)
            if c.dpp and ('s', 126) in sw: n = max(n, 5)
            if sw & crd:
                n = max(n, 4 if c.op.startswith(('v_readlane', 'v_writelane', 'v_div_fmas')) else 2)
            if ('s', 126) in sw and c.op.startswith(('v_readlane', 'v_readfirstlane', 'v_writelane', 'v_permlane')): n = max(n, 4)
            if ('sdwa' in p.op or 'op_sel' in p.text and not p.op.startswith('v_pk')) and vw & (crd | set(c.wr)): n = max(n, 1)
            if p.dot and vw & (crd | set(c.wr)):
                same = (c.op == p.op)
                if not (same and not (vw & set(ab_of_dot(c)))): n = max(n, 3)
        if p.dot and c.cls in ('vmem', 'ds') and vw & set(c.rd): n = max(n, 3)
        if c.cls == 'vmem' and sw & set(c.rd): n = max(n, 5)
    if p.cls == 'salu':
        if ('s', 124) in pw and c.cls == 'vmem' and c.lds_dma: n = max(n, 1)
    if p.cls == 'vmem' and p.storedata:
        if set(p.storedata) & set(c.wr): n = max(n, 2 if c.cls in ('valu', 'mfma') else 1)
    if p.cls == 'mfma':
        idx = {2: 0, 4: 1, 8: 2, 16: 3}[p.passes]
        if c.cls == 'mfma':
            if pw & set(c.ab): n = max(n, (5, 8, 12, 20)[idx])
            if pw & set(c.srcc):
                if c.srcc == p.wr and c.passes == p.passes: n = max(n, (2, 0, 0, 0)[idx])
                else: n = max(n, (4, 6, 10, 18)[idx])
            elif pw & set(c.wr):
                n = max(n, (4, 6, 10, 18)[idx])
        elif c.cls in ('valu', 'vmem', 'ds'):
            if pw & (set(c.rd) | set(c.wr)): n = max(n, (5, 8, 12, 20)[idx])
            if c.cls == 'valu' and set(p.srcc) & set(c.wr): n = max(n, (1, 3, 7, 15)[idx])
            if c.cls in ('vmem', 'ds') and set(p.srcc) & set(c.wr): n = max(n, (1, 3, 7, 15)[idx])
    return n

def ab_of_dot(c):
    t = c.text.split(';')[0].strip().split(None, 1)[1]
    ops = [o.strip() for o in t.split(',')]
    return regs_of(ops[1]) + regs_of(ops[2])

class Kern:
    def __init__(self, name):
        self.name = name
        self.items = []
        self.nlabel = 0
    def __call__(self, text):
        for line in text.split('\n'):
            line = line.strip()
            if line: self.items.append(('i', line))
    def label(self, l): self.items.append(('l', l))
    def newlabel(self, base):
        self.nlabel += 1
        return f'L_{self.name}_{base}_{self.nlabel}'
    def raw(self, t): self.items.append(('r', t))
    def comment(self, t): self.items.append(('r', '    ; ' + t))
    def skip_begin(self): self.items.append(('sb', ''))
    def skip_end(self): self.items.append(('se', ''))
    def drain(self):
        self('s_nop 15'); self('s_nop 3')
    def render(self, report=False):
        out = []; hist = []
        nn = 0; inskip = False; region = []
        for kind, t in self.items:
            if kind == 'sb': region = []; inskip = True; continue
            if kind == 'se':
                for p in region: p.states = 0
                inskip = False; continue
            if kind == 'l': out.append(t + ':'); continue
            if kind == 'r': out.append(t); continue
            c = Ins(t)
            need = 0; dist = 0
            for p in reversed(hist):
                k = need_states(p, c) - dist
                if k > need: need = k; who = p
                dist += p.states
                if dist >= 20: break
            if need > 0:
                nn += 1
                if report: print(f'[{self.name}] nop {need}: {who.text}  ->  {t}')
                rem = need
                while rem > 0:
                    k = min(rem, 16)
                    nop = Ins(f's_nop {k-1}'); hist.append(nop); out.append(f'    s_nop {k-1}')
                    if inskip: region.append(nop)
                    rem -= k
            hist.append(c); out.append('    ' + t)
            if inskip: region.append(c)
            if len(hist) > 600: hist = hist[-400:]
        return '\n'.join(out)
    def maxregs(self):
        mv = ma = ms = -1
        for kind, t in self.items:
            if kind != 'i': continue
            for k, i in regs_of(t.split(';')[0]):
                if k == 'v': mv = max(mv, i)
                elif k == 'a': ma = max(ma, i)
                elif k == 's' and i < 102: ms = max(ms, i)
        return mv + 1, ma + 1, ms + 1

def v(a, n=1): return f'v{a}' if n == 1 else f'v[{a}:{a+n-1}]'
def a_(a, n=1): return f'a{a}' if n == 1 else f'a[{a}:{a+n-1}]'
def s(a, n=1): return f's{a}' if n == 1 else f's[{a}:{a+n-1}]'

class Alloc:
    def __init__(self, start=0, limit=256): self.p = start; self.limit = limit
    def __call__(self, n=1, align=None):
        if align is None: align = 2 if n > 1 else 1
        self.p = (self.p + align - 1) // align * align
        r = self.p; self.p += n
        assert self.p <= self.limit, f'out of registers {self.p}'
        return r

def kernel_text(k, report=False):
    nv, na, ns = k.maxregs()
    acc = max(4, (nv + 3) // 4 * 4)
    nfv = acc + na if na > 0 else nv
    body = k.render(report)
    txt = f""".text
.globl {k.name}
.p2align 8
.type {k.name},@function
{k.name}:
{body}
"""
    desc = f""".amdhsa_kernel {k.name}
  .amdhsa_next_free_vgpr {nfv}
  .amdhsa_next_free_sgpr {max(ns, 16)}
  .amdhsa_accum_offset {acc}
  .amdhsa_group_segment_fixed_size 0
  .amdhsa_kernarg_size 104
  .amdhsa_user_sgpr_count 2
  .amdhsa_user_sgpr_kernarg_segment_ptr 1
  .amdhsa_system_sgpr_workgroup_id_x 1
.end_amdhsa_kernel
"""
    return txt, desc, (nv, na, ns)
```

```python
from asmlib import *
import math, struct
S_, D_, H_, DH, F_ = 2048, 640, 32, 20, 1728
A_X, A_WQ, A_WK, A_WV, A_WO, A_BX, A_W1, A_B1, A_W2, A_B2, A_OUT, A_DBG, A_WS = [8*i for i in range(13)]
WS_Q   = 0
WS_KV  = 0x280000
KIMG, VIMG = 65536, 86016
WS_K2  = WS_KV + 0x28000
WS_CS1 = WS_K2 + 0x4000
WS_ST  = WS_CS1 + 0x4000
WS_O   = 0x300000
WS_H   = 0x580000
WS_HH  = 0x800000
WS_WO  = 0xF00000
WS_W1  = 0x1000000
WS_W2  = 0x1300000
WS_END = 0x1600000
assert WS_ST + 0x20000 <= WS_O
def f32(x): return '0x%08x' % struct.unpack('<I', struct.pack('<f', x))[0]
QSCALE = DH ** -0.5 * math.log2(math.e)

def srd(k, d, base, size, add=0):
    if add:
        k(f's_add_u32 {s(d)}, {s(base)}, {add}')
        k(f's_addc_u32 {s(d+1)}, {s(base+1)}, 0')
    else:
        k(f's_mov_b32 {s(d)}, {s(base)}')
        k(f's_mov_b32 {s(d+1)}, {s(base+1)}')
    k(f's_mov_b32 {s(d+2)}, {size}')
    k(f's_mov_b32 {s(d+3)}, 0x00020000')

def xsum_g(k, r, t):
    k(f'v_mov_b32 {v(t)}, {v(r)}')
    k(f'v_permlane16_swap_b32 {v(r)}, {v(t)}')
    k(f'v_add_f32 {v(r)}, {v(r)}, {v(t)}')
    k(f'v_mov_b32 {v(t)}, {v(r)}')
    k(f'v_permlane32_swap_b32 {v(r)}, {v(t)}')
    k(f'v_add_f32 {v(r)}, {v(r)}, {v(t)}')

def xsum_g_multi(k, rs, ts):
    for op in ('v_permlane16_swap_b32', 'v_permlane32_swap_b32'):
        for r, t in zip(rs, ts): k(f'v_mov_b32 {v(t)}, {v(r)}')
        for r, t in zip(rs, ts): k(f'{op} {v(r)}, {v(t)}')
        for r, t in zip(rs, ts): k(f'v_add_f32 {v(r)}, {v(r)}, {v(t)}')
```

```python
from common import *

def gen_k1():
    k = Kern('k1_qkv_kernel')
    SX, SW, SW2, SO = 4, 8, 12, 16
    sW_, sRB, sCB, sRHO, sF, sTH, sI = 20, 21, 22, 23, 24, 25, 26
    sT = [40 + i for i in range(12)]
    sOX = [52 + i for i in range(5)]
    sOW = [57 + i for i in range(5)]
    sMX, sMW = 62, 63
    sEXA, sEXB = 64, 66
    va = Alloc(1, 256)
    vL = va(); vT = [va() for _ in range(8)]
    vXO = [va() for _ in range(3)]; vWO = [va() for _ in range(2)]
    vXA = [va() for _ in range(4)]; vWA = va()
    vt_, vg_ = va(), va()
    ONES = va(4)
    ACC = [va(4) for _ in range(3)]; CS = va(4)
    SUM = [va() for _ in range(3)]; SQ = [va() for _ in range(3)]
    FR = [dict(x=[va(4) for _ in range(3)], w=va(4)) for _ in range(4)]
    BUF = 40960; WOFF = 24576
    Lend = 'L_k1_end'
    k(f's_cmp_ge_u32 s2, 256'); k(f's_cbranch_scc1 {Lend}')
    k(f's_load_dwordx4 s[28:31], s[0:1], {A_X}')
    k(f's_load_dwordx4 s[32:35], s[0:1], {A_WK}')
    k(f's_load_dwordx2 s[36:37], s[0:1], {A_WS}')
    k(f's_load_dwordx2 s[38:39], s[0:1], {A_W1}')
    k(f'v_lshrrev_b32 {v(vT[0])}, 6, v0')
    k(f'v_and_b32 {v(vL)}, 63, v0')
    k(f'v_readfirstlane_b32 {s(sW_)}, {v(vT[0])}')
    k(f's_and_b32 {s(sI)}, s2, 7'); k(f's_lshl_b32 {s(sI)}, {s(sI)}, 5')
    k(f's_lshr_b32 {s(sT[0])}, s2, 3'); k(f's_add_u32 {s(sI)}, {s(sI)}, {s(sT[0])}')
    k(f'v_and_b32 {v(vt_)}, 15, {v(vL)}'); k(f'v_lshrrev_b32 {v(vg_)}, 4, {v(vL)}')
    Lcs = 'L_k1_colsum'
    k(f's_cmp_ge_u32 {s(sI)}, 242'); k(f's_cbranch_scc1 {Lcs}')
    k(f's_mul_i32 {s(sRB)}, {s(sI)}, 373'); k(f's_lshr_b32 {s(sRB)}, {s(sRB)}, 12')
    k(f's_mul_i32 {s(sT[0])}, {s(sRB)}, 11'); k(f's_sub_u32 {s(sCB)}, {s(sI)}, {s(sT[0])}')
    k(f's_add_u32 {s(sRHO)}, {s(sRB)}, {s(sCB)}')
    k(f's_mul_i32 {s(sT[0])}, {s(sRHO)}, 13'); k(f's_lshr_b32 {s(sT[0])}, {s(sT[0])}, 6')
    k(f's_mul_i32 {s(sT[0])}, {s(sT[0])}, 5'); k(f's_sub_u32 {s(sRHO)}, {s(sRHO)}, {s(sT[0])}')
    k(f's_and_b32 {s(sF)}, {s(sW_)}, 3'); k(f's_lshr_b32 {s(sTH)}, {s(sW_)}, 2')
    sLD = sT[1]
    k(f's_cmp_eq_u32 {s(sCB)}, 10'); k(f's_cselect_b32 {s(sLD)}, 40, 1280')
    for sg in range(5):
        k(f's_add_u32 {s(sT[0])}, {s(sRHO)}, {sg}')
        k(f's_sub_u32 {s(sT[2])}, {s(sT[0])}, 5')
        k(f's_cmp_ge_u32 {s(sT[0])}, 5'); k(f's_cselect_b32 {s(sT[0])}, {s(sT[2])}, {s(sT[0])}')
        k(f's_lshl_b32 {s(sOX[sg])}, {s(sT[0])}, 8')
        k(f's_lshl_b32 {s(sT[0])}, {s(sT[0])}, 7')
        k(f's_mul_i32 {s(sOW[sg])}, {s(sT[0])}, {s(sLD)}')
    k(f's_mul_i32 {s(sT[0])}, {s(sW_)}, 12')
    k(f's_mul_i32 {s(sT[2])}, {s(sRB)}, 96')
    k(f's_movk_i32 {s(sT[3])}, 1280')
    for a in range(3):
        k(f'v_add_u32 {v(vT[0])}, {s(sT[0])}, {v(vg_)}')
        if a: k(f'v_add_u32 {v(vT[0])}, {4*a}, {v(vT[0])}')
        k(f'v_and_b32 {v(vT[1])}, 15, {v(vT[0])}')
        k(f'v_xor_b32 {v(vT[1])}, {v(vT[1])}, {v(vt_)}')
        k(f'v_add_u32 {v(vT[0])}, {s(sT[2])}, {v(vT[0])}')
        k(f'v_mul_lo_u32 {v(vT[0])}, {v(vT[0])}, {s(sT[3])}')
        k(f'v_lshl_add_u32 {v(vXO[a])}, {v(vT[1])}, 4, {v(vT[0])}')
    k(f's_lshl_b32 {s(sMX)}, {s(sT[0])}, 8')
    k(f's_lshl_b32 {s(sMW)}, {s(sW_)}, 11'); k(f's_add_u32 {s(sMW)}, {s(sMW)}, {WOFF}')
    k(f's_lshl_b32 {s(sT[0])}, {s(sW_)}, 4')
    k(f's_lshl_b32 {s(sT[2])}, {s(sCB)}, 7')
    k(f's_cmp_eq_u32 {s(sCB)}, 10')
    k(f's_cselect_b32 {s(sT[2])}, 0, {s(sT[2])}')
    k(f's_cselect_b32 {s(sT[3])}, 1, 3')
    k(f's_cselect_b32 {s(sT[4])}, 3, 5')
    for b in range(2):
        k(f'v_lshrrev_b32 {v(vT[0])}, 3, {v(vL)}')
        k(f'v_add_u32 {v(vT[0])}, {s(sT[0])}, {v(vT[0])}')
        if b: k(f'v_add_u32 {v(vT[0])}, 8, {v(vT[0])}')
        k(f'v_mul_lo_u32 {v(vT[0])}, {v(vT[0])}, {s(sLD)}')
        k(f'v_bfe_u32 {v(vT[1])}, {v(vL)}, 1, 2')
        k(f'v_bfe_u32 {v(vT[2])}, {v(vL)}, 4, 1')
        k(f'v_xor_b32 {v(vT[1])}, {v(vT[1])}, {v(vT[2])}')
        if b: k(f'v_xor_b32 {v(vT[1])}, 2, {v(vT[1])}')
        k(f'v_and_b32 {v(vT[1])}, {s(sT[3])}, {v(vT[1])}')
        k(f'v_lshlrev_b32 {v(vT[1])}, {s(sT[4])}, {v(vT[1])}')
        k(f'v_and_b32 {v(vT[2])}, 1, {v(vL)}')
        k(f'v_lshl_add_u32 {v(vT[1])}, {v(vT[2])}, 4, {v(vT[1])}')
        k(f'v_add3_u32 {v(vWO[b])}, {v(vT[0])}, {v(vT[1])}, {s(sT[2])}')
    k(f's_mov_b32 {s(sEXA)}, 0x0f0f0f0f'); k(f's_mov_b32 {s(sEXA+1)}, 0x0f0f0f0f')
    k(f's_mov_b32 {s(sEXB)}, 0xf0f0f0f0'); k(f's_mov_b32 {s(sEXB+1)}, 0xf0f0f0f0')
    k('s_waitcnt lgkmcnt(0)')
    srd(k, SX, 28, S_ * D_ * 2)
    srd(k, SW2, 34, D_ * DH * 2)
    k(f's_cmp_eq_u32 {s(sCB)}, 10')
    k(f's_cselect_b32 {s(SW)}, s32, s30'); k(f's_cselect_b32 {s(SW+1)}, s33, s31')
    k(f's_mov_b32 {s(SW+2)}, {D_*D_*2}')
    k(f's_cselect_b32 {s(SW+2)}, {D_*DH*2}, {s(SW+2)}'); k(f's_mov_b32 {s(SW+3)}, 0x00020000')

    def issue(sg, kv):
        buf = (sg % 4) * BUF
        for a in range(3):
            k(f's_add_u32 m0, {s(sMX)}, {buf + a*1024}')
            k(f'buffer_load_dwordx4 {v(vXO[a])}, {s(SX,4)}, {s(sOX[sg])} offen lds')
        for b in range(2):
            k(f's_add_u32 m0, {s(sMW)}, {buf + b*1024}')
            if not kv:
                k(f'buffer_load_dwordx4 {v(vWO[b])}, {s(SW,4)}, {s(sOW[sg])} offen lds')
            else:
                k(f's_mov_b64 exec, {s(sEXA if b == 0 else sEXB, 2)}')
                k(f'buffer_load_dwordx4 {v(vWO[b])}, {s(SW,4)}, {s(sOW[sg])} offen lds')
                k(f's_mov_b64 exec, {s(sEXB if b == 0 else sEXA, 2)}')
                k(f'buffer_load_dwordx4 {v(vWO[b])}, {s(SW2,4)}, {s(sOW[sg])} offen lds')
                k('s_mov_b64 exec, -1')

    def setup_compute():
        k(f's_mul_i32 {s(sT[0])}, {s(sTH)}, {48*256}')
        k(f'v_xor_b32 {v(vT[0])}, {v(vg_)}, {v(vt_)}')
        for sp in range(4):
            k(f'v_xor_b32 {v(vT[1])}, {4*sp}, {v(vT[0])}')
            k(f'v_lshlrev_b32 {v(vT[1])}, 4, {v(vT[1])}')
            k(f'v_lshl_add_u32 {v(vT[1])}, {v(vt_)}, 8, {v(vT[1])}')
            k(f'v_add_u32 {v(vXA[sp])}, {s(sT[0])}, {v(vT[1])}')
        k(f'v_bfe_u32 {v(vT[0])}, {v(vL)}, 2, 2')
        k(f'v_lshl_add_u32 {v(vT[1])}, {v(vg_)}, 3, {v(vT[0])}')
        k(f'v_lshrrev_b32 {v(vT[0])}, 1, {v(vT[0])}')
        k(f'v_and_b32 {v(vT[2])}, 1, {v(vg_)}')
        k(f'v_lshl_or_b32 {v(vT[0])}, {v(vT[2])}, 1, {v(vT[0])}')
        k(f'v_xor_b32 {v(vT[0])}, {s(sF)}, {v(vT[0])}')
        k(f'v_lshlrev_b32 {v(vT[0])}, 5, {v(vT[0])}')
        k(f'v_lshl_add_u32 {v(vT[0])}, {v(vT[1])}, 7, {v(vT[0])}')
        k(f'v_and_b32 {v(vT[2])}, 3, {v(vL)}')
        k(f'v_lshl_add_u32 {v(vT[0])}, {v(vT[2])}, 3, {v(vT[0])}')
        k(f'v_add_u32 {v(vWA)}, {WOFF}, {v(vT[0])}')
        for i in range(4): k(f'v_mov_b32 {v(ONES+i)}, 0x3f803f80')
        for r in ACC + [CS]:
            for i in range(4): k(f'v_mov_b32 {v(r+i)}, 0')
        for r in SUM + SQ: k(f'v_mov_b32 {v(r)}, 0')

    def reads(sp):
        fr = FR[sp]
        k(f'ds_read_b64_tr_b16 {v(fr["w"],2)}, {v(vWA)} offset:{sp*4096}')
        k(f'ds_read_b64_tr_b16 {v(fr["w"]+2,2)}, {v(vWA)} offset:{sp*4096+512}')
        for a in range(3):
            k(f'ds_read_b128 {v(fr["x"][a],4)}, {v(vXA[sp])} offset:{a*4096}')

    def mainloop(kv, swap):
        n = 7 if kv else 5
        for sg in range(4): issue(sg, kv)
        setup_compute()
        for sg in range(5):
            k(f's_waitcnt vmcnt({[3*n, 2*n, 2*n, n, 0][sg]})')
            k('s_barrier')
            for sp in range(3): reads(sp)
            if sg == 1: issue(4, kv)
            for sp in range(4):
                k(f's_waitcnt lgkmcnt({[10, 10, 5, 0][sp]})')
                fr = FR[sp]
                for a in range(3):
                    A, B = (fr['w'], fr['x'][a]) if not swap else (fr['x'][a], fr['w'])
                    k(f'v_mfma_f32_16x16x32_bf16 {v(ACC[a],4)}, {v(A,4)}, {v(B,4)}, {v(ACC[a],4)}')
                A, B = (fr['w'], ONES) if not swap else (ONES, fr['w'])
                k(f'v_mfma_f32_16x16x32_bf16 {v(CS,4)}, {v(A,4)}, {v(B,4)}, {v(CS,4)}')
                if sp == 0: reads(3)
                L = k.newlabel('st')
                k(f's_cmp_eq_u32 {s(sF)}, {sp}'); k(f's_cbranch_scc0 {L}')
                k.skip_begin()
                for i in range(4):
                    for a in range(3):
                        k(f'v_dot2c_f32_bf16 {v(SUM[a])}, {v(fr["x"][a]+i)}, {v(ONES)}')
                        k(f'v_dot2c_f32_bf16 {v(SQ[a])}, {v(fr["x"][a]+i)}, {v(fr["x"][a]+i)}')
                k.skip_end()
                k.label(L)
            if sg < 4:
                d = BUF if sg < 3 else -3 * BUF
                for r in vXA + [vWA]: k(f'v_add_u32 {v(r)}, {d & 0xffffffff}, {v(r)}')
        xsum_g_multi(k, SUM + SQ, vT[:6])
        PR = FR[0]['x'][0]
        k(f's_mul_i32 {s(sT[0])}, {s(sTH)}, {48*32}')
        k(f's_add_u32 {s(sT[0])}, {s(sT[0])}, {BUF}')
        k(f'v_lshl_add_u32 {v(vT[6])}, {v(vt_)}, 5, {s(sT[0])}')
        k(f's_lshl_b32 {s(sT[1])}, {s(sF)}, 3')
        k(f'v_add_u32 {v(vT[7])}, {s(sT[1])}, {v(vT[6])}')
        for a in range(3):
            k(f'v_mov_b32 {v(PR+2*a)}, {v(SUM[a])}'); k(f'v_mov_b32 {v(PR+2*a+1)}, {v(SQ[a])}')
            k(f'ds_write_b64 {v(vT[7])}, {v(PR+2*a,2)} offset:{a*512}')
        k('s_waitcnt lgkmcnt(0)'); k('s_barrier')
        R = [FR[1+a]['x'][0] for a in range(3)]
        for a in range(3):
            k(f'ds_read_b128 {v(R[a],4)}, {v(vT[6])} offset:{a*512}')
            k(f'ds_read_b128 {v(R[a]+4,4)}, {v(vT[6])} offset:{a*512+16}')
        k('s_waitcnt lgkmcnt(0)')
        MEAN, RSTD = SUM, SQ
        k(f's_mov_b32 {s(sT[0])}, {f32(1.0/D_)}')
        for a in range(3):
            r = R[a]
            k(f'v_pk_add_f32 {v(r,2)}, {v(r,2)}, {v(r+2,2)}')
            k(f'v_pk_add_f32 {v(r+4,2)}, {v(r+4,2)}, {v(r+6,2)}')
            k(f'v_pk_add_f32 {v(r,2)}, {v(r,2)}, {v(r+4,2)}')
            k(f'v_mul_f32 {v(MEAN[a])}, {s(sT[0])}, {v(r)}')
            k(f'v_mul_f32 {v(r+1)}, {s(sT[0])}, {v(r+1)}')
            k(f'v_fma_f32 {v(r+1)}, -{v(MEAN[a])}, {v(MEAN[a])}, {v(r+1)}')
            k(f'v_max_f32 {v(r+1)}, 0, {v(r+1)}')
            k(f'v_add_f32 {v(r+1)}, {f32(1e-5)}, {v(r+1)}')
            k(f'v_rsq_f32 {v(RSTD[a])}, {v(r+1)}')
        return MEAN, RSTD

    def finish_std(MEAN, RSTD, scale, voff, astep):
        for a in range(3):
            if scale: k(f'v_mul_f32 {v(RSTD[a])}, {f32(scale)}, {v(RSTD[a])}')
            for i in range(4):
                k(f'v_fma_f32 {v(ACC[a]+i)}, -{v(MEAN[a])}, {v(CS+i)}, {v(ACC[a]+i)}')
                k(f'v_mul_f32 {v(ACC[a]+i)}, {v(RSTD[a])}, {v(ACC[a]+i)}')
            k(f'v_cvt_pk_bf16_f32 {v(ACC[a])}, {v(ACC[a])}, {v(ACC[a]+1)}')
            k(f'v_cvt_pk_bf16_f32 {v(ACC[a]+1)}, {v(ACC[a]+2)}, {v(ACC[a]+3)}')
            k(f'buffer_store_dwordx2 {v(ACC[a],2)}, {v(voff[a])}, {s(SO,4)}, 0 offen')

    Lkv, Lv = 'L_k1_kv', 'L_k1_v'
    k(f's_cmp_eq_u32 {s(sCB)}, 10'); k(f's_cbranch_scc1 {Lkv}')
    M, Rr = mainloop(False, False)
    srd(k, SO, 36, S_ * D_ * 2, WS_Q)
    k(f's_mul_i32 {s(sT[0])}, {s(sRB)}, 96'); k(f's_mul_i32 {s(sT[1])}, {s(sTH)}, 48')
    k(f's_add_u32 {s(sT[0])}, {s(sT[0])}, {s(sT[1])}')
    k(f's_mul_i32 {s(sT[0])}, {s(sT[0])}, 1280')
    k(f's_lshl_b32 {s(sT[1])}, {s(sCB)}, 7'); k(f's_add_u32 {s(sT[0])}, {s(sT[0])}, {s(sT[1])}')
    k(f's_lshl_b32 {s(sT[1])}, {s(sF)}, 5'); k(f's_add_u32 {s(sT[0])}, {s(sT[0])}, {s(sT[1])}')
    k(f'v_mul_u32_u24 {v(vT[0])}, 1280, {v(vt_)}')
    k(f'v_lshl_add_u32 {v(vT[0])}, {v(vg_)}, 3, {v(vT[0])}')
    k(f'v_add_u32 {v(vT[0])}, {s(sT[0])}, {v(vT[0])}')
    k(f'v_add_u32 {v(vT[1])}, {16*1280}, {v(vT[0])}')
    k(f'v_add_u32 {v(vT[2])}, {32*1280}, {v(vT[0])}')
    finish_std(M, Rr, QSCALE, vT[:3], None)
    k('s_endpgm')
    k.label(Lkv)
    k(f's_cmp_ge_u32 {s(sF)}, 2'); k(f's_cbranch_scc1 {Lv}')
    M, Rr = mainloop(True, False)
    k(f's_cmp_eq_u32 {s(sF)}, 0')
    k(f's_mov_b32 {s(sT[2])}, {WS_K2}'); k(f's_mov_b32 {s(SO+2)}, 16384')
    k(f's_cselect_b32 {s(sT[2])}, {WS_KV}, {s(sT[2])}')
    k(f's_cselect_b32 {s(SO+2)}, {KIMG}, {s(SO+2)}')
    k(f's_add_u32 {s(SO)}, s36, {s(sT[2])}'); k(f's_addc_u32 {s(SO+1)}, s37, 0'); k(f's_mov_b32 {s(SO+3)}, 0x00020000')
    k(f's_mul_i32 {s(sT[0])}, {s(sRB)}, 96'); k(f's_mul_i32 {s(sT[1])}, {s(sTH)}, 48')
    k(f's_add_u32 {s(sT[0])}, {s(sT[0])}, {s(sT[1])}')
    k(f's_cmp_eq_u32 {s(sF)}, 0'); k(f's_cselect_b64 {s(sEXA,2)}, -1, 0')
    k(f'v_cmp_eq_u32 vcc, 3, {v(vg_)}')
    for a in range(3):
        key, A1, A2 = vT[3], vT[4], vT[5]
        k(f'v_add_u32 {v(key)}, {s(sT[0])}, {v(vt_)}')
        if a: k(f'v_add_u32 {v(key)}, {16*a}, {v(key)}')
        k(f'v_lshrrev_b32 {v(A1)}, 5, {v(key)}'); k(f'v_lshlrev_b32 {v(A1)}, 10, {v(A1)}')
        k(f'v_and_b32 {v(vT[6])}, 31, {v(key)}'); k(f'v_lshl_add_u32 {v(A1)}, {v(vT[6])}, 4, {v(A1)}')
        k(f'v_lshrrev_b32 {v(vT[6])}, 1, {v(vg_)}'); k(f'v_lshl_add_u32 {v(A1)}, {v(vT[6])}, 9, {v(A1)}')
        k(f'v_and_b32 {v(vT[6])}, 1, {v(vg_)}'); k(f'v_lshl_add_u32 {v(A1)}, {v(vT[6])}, 3, {v(A1)}')
        k(f'v_lshrrev_b32 {v(A2)}, 7, {v(key)}'); k(f'v_lshlrev_b32 {v(A2)}, 10, {v(A2)}')
        k(f'v_and_b32 {v(vT[6])}, 63, {v(key)}'); k(f'v_lshl_add_u32 {v(A2)}, {v(vT[6])}, 4, {v(A2)}')
        k(f'v_bfe_u32 {v(vT[6])}, {v(key)}, 6, 1'); k(f'v_lshl_add_u32 {v(A2)}, {v(vT[6])}, 3, {v(A2)}')
        k(f'v_mov_b32 {v(vT[6])}, 0x7fff0000')
        k(f'v_cndmask_b32 {v(A2)}, {v(vT[6])}, {v(A2)}, vcc')
        k(f'v_cndmask_b32 {v(vT[a])}, {v(A2)}, {v(A1)}, {s(sEXA,2)}')
    finish_std(M, Rr, None, vT[:3], None)
    k('s_endpgm')
    k.label(Lv)
    M, Rr = mainloop(True, True)
    srd(k, SO, 36, VIMG, WS_KV + KIMG)
    k(f's_lshl_b32 {s(sT[0])}, {s(sW_)}, 9'); k(f's_add_u32 {s(sT[0])}, {s(sT[0])}, {2*BUF}')
    k(f'v_lshl_add_u32 {v(vT[6])}, {v(vt_)}, 3, {s(sT[0])}')
    k(f'v_lshl_add_u32 {v(vT[7])}, {v(vg_)}, 5, {s(sT[0])}')
    PR = FR[0]['x'][0]
    for a in range(3):
        k(f'v_mov_b32 {v(PR+2*a)}, {v(M[a])}'); k(f'v_mov_b32 {v(PR+2*a+1)}, {v(Rr[a])}')
        k(f'ds_write_b64 {v(vT[6])}, {v(PR+2*a,2)} offset:{a*128}')
    k('s_waitcnt lgkmcnt(0)')
    R = [FR[1+a]['x'][0] for a in range(3)]
    for a in range(3):
        k(f'ds_read_b128 {v(R[a],4)}, {v(vT[7])} offset:{a*128}')
        k(f'ds_read_b128 {v(R[a]+4,4)}, {v(vT[7])} offset:{a*128+16}')
    k(f's_mul_i32 {s(sT[0])}, {s(sRB)}, 6'); k(f's_mul_i32 {s(sT[1])}, {s(sTH)}, 3')
    k(f's_add_u32 {s(sT[0])}, {s(sT[0])}, {s(sT[1])}'); k(f's_mul_i32 {s(sT[0])}, {s(sT[0])}, 672')
    k(f's_cmp_eq_u32 {s(sF)}, 3')
    k(f's_cselect_b32 {s(sT[1])}, 4, 0')
    k(f's_cselect_b32 {s(sT[2])}, 11, 99')
    k(f's_cselect_b32 {s(sT[3])}, 11, 0')
    k(f'v_add_u32 {v(vT[0])}, {s(sT[1])}, {v(vt_)}')
    k(f'v_cmp_eq_u32 {s(sEXA,2)}, {s(sT[2])}, {v(vt_)}')
    k(f'v_mov_b32 {v(vT[1])}, 20')
    k(f'v_cndmask_b32 {v(vT[0])}, {v(vT[0])}, {v(vT[1])}, {s(sEXA,2)}')
    k(f'v_lshlrev_b32 {v(vT[0])}, 4, {v(vT[0])}')
    k(f'v_and_b32 {v(vT[1])}, 1, {v(vg_)}'); k(f'v_mul_u32_u24 {v(vT[1])}, 336, {v(vT[1])}')
    k(f'v_lshrrev_b32 {v(vT[2])}, 1, {v(vg_)}'); k(f'v_lshl_add_u32 {v(vT[1])}, {v(vT[2])}, 3, {v(vT[1])}')
    k(f'v_add3_u32 {v(vT[0])}, {v(vT[0])}, {v(vT[1])}, {s(sT[0])}')
    k(f'v_cmp_le_u32 vcc, {s(sT[3])}, {v(vt_)}')
    k(f'v_mov_b32 {v(vT[1])}, 0x7fff0000')
    k(f'v_cndmask_b32 {v(vT[0])}, {v(vT[1])}, {v(vT[0])}, vcc')
    k('s_waitcnt lgkmcnt(0)')
    for a in range(3):
        for i in range(4):
            k(f'v_fma_f32 {v(ACC[a]+i)}, -{v(R[a]+2*i)}, {v(CS)}, {v(ACC[a]+i)}')
            k(f'v_mul_f32 {v(ACC[a]+i)}, {v(R[a]+2*i+1)}, {v(ACC[a]+i)}')
        k(f'v_cvt_pk_bf16_f32 {v(ACC[a])}, {v(ACC[a])}, {v(ACC[a]+1)}')
        k(f'v_cvt_pk_bf16_f32 {v(ACC[a]+1)}, {v(ACC[a]+2)}, {v(ACC[a]+3)}')
        k(f'v_cndmask_b32 {v(ACC[a])}, {v(ACC[a])}, {v(ONES)}, {s(sEXA,2)}')
        k(f'v_cndmask_b32 {v(ACC[a]+1)}, {v(ACC[a]+1)}, {v(ONES)}, {s(sEXA,2)}')
        k(f'buffer_store_dwordx2 {v(ACC[a],2)}, {v(vT[0])}, {s(SO,4)}, 0 offen offset:{a*672}')
    k('s_endpgm')
    k.label(Lcs)
    k('s_waitcnt lgkmcnt(0)')
    srd(k, SW, 38, D_ * F_ * 2)
    srd(k, SO, 36, 1792 * 4, WS_CS1)
    k(f's_sub_u32 {s(sI)}, {s(sI)}, 242')
    k(f's_mul_i32 {s(sT[0])}, {s(sW_)}, {80*3456}')
    k(f's_lshl_b32 {s(sT[1])}, {s(sI)}, 8'); k(f's_add_u32 {s(sT[0])}, {s(sT[0])}, {s(sT[1])}')
    k(f'v_mul_u32_u24 {v(vT[0])}, 3456, {v(vg_)}')
    k(f'v_lshl_add_u32 {v(vT[0])}, {v(vt_)}, 4, {v(vT[0])}')
    LD = 32
    for i in range(20):
        k(f'buffer_load_dwordx4 {v(LD+4*i,4)}, {v(vT[0])}, {s(SW,4)}, {s(sT[0])} offen')
        if i < 19: k(f's_add_u32 {s(sT[0])}, {s(sT[0])}, {4*3456}')
    AC = 16
    for i in range(8): k(f'v_mov_b32 {v(AC+i)}, 0')
    k(f'v_mov_b32 {v(vT[1])}, 0x00003f80'); k(f'v_mov_b32 {v(vT[2])}, 0x3f800000')
    for i in range(20):
        k(f's_waitcnt vmcnt({19-i})')
        for j in range(4):
            k(f'v_dot2c_f32_bf16 {v(AC+2*j)}, {v(LD+4*i+j)}, {v(vT[1])}')
            k(f'v_dot2c_f32_bf16 {v(AC+2*j+1)}, {v(LD+4*i+j)}, {v(vT[2])}')
    xsum_g_multi(k, [AC+i for i in range(8)], [24+i for i in range(8)])
    k(f's_lshl_b32 {s(sT[1])}, {s(sW_)}, 9')
    k(f'v_and_b32 {v(vT[0])}, 15, v0')
    k(f'v_lshl_add_u32 {v(vT[0])}, {v(vT[0])}, 5, {s(sT[1])}')
    k(f'ds_write_b128 {v(vT[0])}, {v(AC,4)}'); k(f'ds_write_b128 {v(vT[0])}, {v(AC+4,4)} offset:16')
    k('s_waitcnt lgkmcnt(0)'); k('s_barrier')
    k(f's_cmp_ge_u32 {s(sW_)}, 2'); k(f's_cbranch_scc1 {Lend}')
    k(f'v_lshlrev_b32 {v(vT[0])}, 2, v0')
    for i in range(8): k(f'ds_read_b32 {v(AC+i)}, {v(vT[0])} offset:{i*512}')
    k('s_waitcnt lgkmcnt(0)')
    for i in range(1, 8): k(f'v_add_f32 {v(AC)}, {v(AC)}, {v(AC+i)}')
    k(f's_lshl_b32 {s(sT[1])}, {s(sI)}, 9')
    k(f'buffer_store_dword {v(AC)}, {v(vT[0])}, {s(SO,4)}, {s(sT[1])} offen')
    k.label(Lend)
    k('s_endpgm')
    return k, dict(grid=256, block=512, lds=163840)
```

```python
from common import *

def gen_k2(repack=True):
    k = Kern('k2_attn_kernel')
    SWS, SQ, SRC = 4, 8, 12
    sW_, sTB, sHB, sQP, sKH, sHEAD = 20, 21, 22, 23, 24, 25
    sT = [40 + i for i in range(16)]
    sDK, sDV, sDVL = 56, 57, 58
    sU = [60, 61, 62]
    va = Alloc(1, 256)
    vL = va(); vT = [va() for _ in range(8)]
    vL16 = va()
    vKA, vVA = va(), va()
    vM = [va(), va()]
    vRS, vRD = va(), va()
    vOA = [va() for _ in range(3)]
    S = [va(32), va(32)]; C = va(32); O = va(32)
    Q1 = [va(4), va(4)]; Q2 = va(2); P = va(16)
    K1, V1, V2 = va(4), va(4), va(4)
    K2 = va(32)
    RP = va(4)
    Lend = 'L_k2_end'
    k(f's_cmp_ge_u32 s2, 256'); k(f's_cbranch_scc1 {Lend}')
    k(f's_load_dwordx2 s[36:37], s[0:1], {A_WS}')
    k(f's_load_dwordx2 s[30:31], s[0:1], {A_WO}')
    k(f's_load_dwordx2 s[32:33], s[0:1], {A_W1}')
    k(f's_load_dwordx2 s[34:35], s[0:1], {A_W2}')
    k(f'v_lshrrev_b32 {v(vT[0])}, 6, v0')
    k(f'v_and_b32 {v(vL)}, 63, v0')
    k(f'v_readfirstlane_b32 {s(sW_)}, {v(vT[0])}')
    k(f's_and_b32 {s(sTB)}, s2, 7'); k(f's_lshl_b32 {s(sTB)}, {s(sTB)}, 2')
    k(f's_lshr_b32 {s(sT[0])}, s2, 6'); k(f's_add_u32 {s(sTB)}, {s(sTB)}, {s(sT[0])}')
    k(f's_lshr_b32 {s(sHB)}, s2, 3'); k(f's_and_b32 {s(sHB)}, {s(sHB)}, 7')
    k(f's_and_b32 {s(sQP)}, {s(sW_)}, 3'); k(f's_lshr_b32 {s(sKH)}, {s(sW_)}, 2')
    k(f's_lshl_b32 {s(sHEAD)}, {s(sHB)}, 2'); k(f's_add_u32 {s(sHEAD)}, {s(sHEAD)}, {s(sQP)}')
    k(f'v_lshlrev_b32 {v(vL16)}, 4, {v(vL)}')
    k(f's_mul_i32 {s(sT[0])}, {s(sTB)}, {64*1280}'); k(f's_mul_i32 {s(sT[1])}, {s(sHEAD)}, 40')
    k(f's_add_u32 {s(sT[0])}, {s(sT[0])}, {s(sT[1])}')
    k(f's_add_u32 {s(sT[1])}, {s(sT[0])}, {32*1280}')
    k(f'v_and_b32 {v(vT[0])}, 31, {v(vL)}'); k(f'v_mul_u32_u24 {v(vT[0])}, 1280, {v(vT[0])}')
    k(f'v_lshrrev_b32 {v(vT[1])}, 5, {v(vL)}'); k(f'v_lshl_add_u32 {v(vT[0])}, {v(vT[1])}, 4, {v(vT[0])}')
    k(f'v_mul_u32_u24 {v(vT[2])}, 1280, {v(vL)}')
    k(f's_lshl_b32 {s(sDK)}, {s(sKH)}, 15'); k(f's_lshl_b32 {s(sT[2])}, {s(sQP)}, 10')
    k(f's_add_u32 {s(sDK)}, {s(sDK)}, {s(sT[2])}')
    k(f's_mul_i32 {s(sDV)}, {s(sKH)}, 43008'); k(f's_add_u32 {s(sDV)}, {s(sDV)}, {KIMG}')
    k(f's_min_u32 {s(sT[3])}, {s(sQP)}, 1'); k(f's_lshl_b32 {s(sT[3])}, {s(sT[3])}, 10')
    k(f's_add_u32 {s(sDVL)}, {s(sDV)}, {s(sT[3])}'); k(f's_add_u32 {s(sDVL)}, {s(sDVL)}, {40*1024}')
    k(f's_add_u32 {s(sDV)}, {s(sDV)}, {s(sT[2])}')
    k(f's_lshl_b32 {s(sT[4])}, {s(sKH)}, 13'); k(f's_add_u32 {s(sT[4])}, {s(sT[4])}, {WS_K2}')
    k(f's_add_u32 {s(sT[5])}, {s(sT[4])}, 4096')
    k('s_waitcnt lgkmcnt(0)')
    srd(k, SWS, 36, WS_END)
    vm = []
    def ld(tag, text): k(text); vm.append(tag)
    def dma(tag, base, off):
        k(f's_add_u32 m0, {s(base)}, {off}')
        k(f's_add_u32 {s(sT[6])}, m0, {WS_KV}')
        ld(tag, f'buffer_load_dwordx4 {v(vL16)}, {s(SWS,4)}, {s(sT[6])} offen lds')
    def dK(r): dma(('K', r), sDK, r * 4096)
    def dV(r):
        if r < 10: dma(('V', r), sDV, r * 4096)
        else: dma(('V', r), sDVL, 0)
    def lK2(j): ld(('K2', j), f'buffer_load_dwordx4 {v(K2+4*j,4)}, {v(vL16)}, {s(SWS,4)}, {s(sT[4] if j < 4 else sT[5])} offen offset:{(j%4)*1024}')
    ld('Q', f'buffer_load_dwordx4 {v(Q1[0],4)}, {v(vT[0])}, {s(SWS,4)}, {s(sT[0])} offen')
    ld('Q', f'buffer_load_dwordx4 {v(Q1[1],4)}, {v(vT[0])}, {s(SWS,4)}, {s(sT[1])} offen')
    ld('Q', f'buffer_load_dwordx2 {v(Q2,2)}, {v(vT[2])}, {s(SWS,4)}, {s(sT[0])} offen offset:32')
    lK2(0); dK(0); dV(0); dV(1)
    lK2(1); dK(1); dV(2); lK2(2); dK(2); dV(3); dV(4)
    lK2(3); dK(3); dV(5); lK2(4); dK(4); dV(6); lK2(5); dK(5); dV(7)
    lK2(6); dK(6); dV(8); lK2(7); dK(7); dV(9); dV(10)
    def wait_for(tags):
        last = max(i for i, t in enumerate(vm) if t in tags)
        k(f's_waitcnt vmcnt({len(vm) - 1 - last})')
    def needs(tile_hi):
        kt = min(tile_hi + 2, 31); vt = min(tile_hi + 1, 31)
        tags = {('K', r) for r in range(kt // 4 + 1)} | {('K2', j) for j in range(kt // 4 + 1)}
        tags |= {('V', r) for r in range(min(10, ((vt + 1) * 1344 - 1) // 4096) + 1)}
        return tags | {'Q'}
    k(f's_lshl_b32 {s(sT[0])}, {s(sKH)}, 15'); k(f'v_add_u32 {v(vKA)}, {s(sT[0])}, {v(vL16)}')
    k(f'v_and_b32 {v(vT[0])}, 31, {v(vL)}'); k(f'v_min_u32 {v(vT[0])}, 20, {v(vT[0])}')
    k(f'v_lshlrev_b32 {v(vT[0])}, 4, {v(vT[0])}')
    k(f'v_lshrrev_b32 {v(vT[1])}, 5, {v(vL)}'); k(f'v_mul_u32_u24 {v(vT[1])}, 336, {v(vT[1])}')
    k(f's_mul_i32 {s(sT[0])}, {s(sKH)}, 43008'); k(f's_add_u32 {s(sT[0])}, {s(sT[0])}, {KIMG}')
    k(f'v_add3_u32 {v(vVA)}, {v(vT[0])}, {v(vT[1])}, {s(sT[0])}')
    for i in range(32): k(f'v_mov_b32 {v(O+i)}, 0')
    for i in range(4): k(f'v_mov_b32 {v(P+12+i)}, 0')
    for i in range(4): k(f'v_mov_b32 {v(V2+i)}, 0')
    k(f'v_and_b32 {v(vT[0])}, 31, {v(vL)}')
    k(f's_lshl_b32 {s(sT[0])}, {s(sKH)}, 11'); k(f's_mul_i32 {s(sT[1])}, {s(sTB)}, {20*4096}')
    k(f's_add_u32 {s(sT[0])}, {s(sT[0])}, {s(sT[1])}'); k(f's_add_u32 {s(sT[0])}, {s(sT[0])}, {WS_O}')
    k(f'v_lshrrev_b32 {v(vT[1])}, 4, {v(vT[0])}'); k(f'v_lshlrev_b32 {v(vT[1])}, 10, {v(vT[1])}')
    k(f'v_and_b32 {v(vT[0])}, 15, {v(vT[0])}'); k(f'v_lshl_add_u32 {v(vT[0])}, {v(vT[0])}, 4, {v(vT[1])}')
    k(f'v_add_u32 {v(vT[0])}, {s(sT[0])}, {v(vT[0])}')
    k(f's_mul_i32 {s(sT[1])}, {s(sHEAD)}, 5')
    for gam in range(3):
        k(f'v_lshrrev_b32 {v(vT[1])}, 5, {v(vL)}')
        k(f'v_add3_u32 {v(vT[1])}, {v(vT[1])}, {s(sT[1])}, {2*gam}')
        k(f'v_lshrrev_b32 {v(vT[2])}, 3, {v(vT[1])}'); k(f'v_lshl_add_u32 {v(vOA[gam])}, {v(vT[2])}, 12, {v(vT[0])}')
        k(f'v_and_b32 {v(vT[2])}, 3, {v(vT[1])}'); k(f'v_lshl_add_u32 {v(vOA[gam])}, {v(vT[2])}, 8, {v(vOA[gam])}')
        k(f'v_bfe_u32 {v(vT[2])}, {v(vT[1])}, 2, 1'); k(f'v_lshl_add_u32 {v(vOA[gam])}, {v(vT[2])}, 3, {v(vOA[gam])}')
    k(f'v_cmp_gt_u32 vcc, 32, {v(vL)}')
    k(f'v_mov_b32 {v(vT[1])}, 0x7fff0000')
    k(f'v_cndmask_b32 {v(vOA[2])}, {v(vT[1])}, {v(vOA[2])}, vcc')

    def m2b(Y, t, Creg):
        kk = K2 + 2 * (t // 2)
        k(f'v_mfma_f32_32x32x4_2b_bf16 {v(Y,32)}, {v(kk,2)}, {v(Q2,2)}, {Creg} cbsz:1 abid:{t%2}')
    def qk(Y, h): k(f'v_mfma_f32_32x32x16_bf16 {v(Y+16*h,16)}, {v(K1,4)}, {v(Q1[h],4)}, {v(Y+16*h,16)}')
    def pv(t, h): k(f'v_mfma_f32_32x32x16_bf16 {v(O+16*t,16)}, {v((V1,V2)[h],4)}, {v(P+8*t+4*h,4)}, {v(O+16*t,16)}')
    def G(X, g):
        for j in range(4): k(f'v_exp_f32 {v(X+4*g+j)}, {v(X+4*g+j)}')
        for j in range(2): k(f'v_cvt_pk_bf16_f32 {v(P+2*g+j)}, {v(X+4*g+2*j)}, {v(X+4*g+2*j+1)}')
    def rK(t): k(f'ds_read_b128 {v(K1,4)}, {v(vKA)} offset:{t*1024}')
    def rV(t, h): k(f'ds_read_b128 {v((V1,V2)[h],4)}, {v(vVA)} offset:{(2*t+h)*672}')
    def rowmax(X, dst, tmp):
        k(f'v_max3_f32 {v(dst)}, {v(X)}, {v(X+1)}, {v(X+2)}')
        for i in range(3, 15, 2): k(f'v_max3_f32 {v(dst)}, {v(dst)}, {v(X+i)}, {v(X+i+1)}')
        k(f'v_max_f32 {v(dst)}, {v(dst)}, {v(X+15)}')
    def halfmax(dst, tmp):
        k(f'v_mov_b32 {v(tmp)}, {v(dst)}')
        k(f'v_permlane32_swap_b32 {v(dst)}, {v(tmp)}')
        k(f'v_max_f32 {v(dst)}, {v(dst)}, {v(tmp)}')

    SCR = KIMG + VIMG
    def rp_setup(r):
        u, m, sS, sG, sC, sLDm, sNF, sMG, sCBS, sBase = sT[0], sT[1], sT[2], sT[3], sT[4], sT[5], sT[7], sT[8], sT[9], sT[10]
        k(f's_mul_i32 {s(u)}, s2, 20'); k(f's_add_u32 {s(u)}, {s(u)}, {s(sW_)}')
        if r: k(f's_add_u32 {s(u)}, {s(u)}, {8*r}')
        L1, L2, LD_ = k.newlabel('rp1'), k.newlabel('rp2'), k.newlabel('rpd')
        k(f's_cmp_ge_u32 {s(u)}, 800'); k(f's_cbranch_scc1 {L1}')
        srd(k, SRC, 30, D_*D_*2)
        k(f's_mov_b32 {s(sCBS)}, {20*5*1024}'); k(f's_mov_b32 {s(sBase)}, {WS_WO}')
        k(f's_branch {L2}')
        k.label(L1)
        k(f's_cmp_lt_u32 {s(u)}, 2960'); k(f's_cbranch_scc1 {LD_}w1')
        k(f's_sub_u32 {s(u)}, {s(u)}, 2960')
        srd(k, SRC, 34, F_*D_*2)
        k(f's_mov_b32 {s(sCBS)}, {54*5*1024}'); k(f's_mov_b32 {s(sBase)}, {WS_W2}')
        k.label(L2)
        k(f's_mul_i32 {s(m)}, {s(u)}, 1639'); k(f's_lshr_b32 {s(m)}, {s(m)}, 14')
        k(f's_mul_i32 {s(sC)}, {s(m)}, 10'); k(f's_sub_u32 {s(sC)}, {s(u)}, {s(sC)}')
        k(f's_movk_i32 {s(sLDm)}, 1280'); k(f's_mov_b32 {s(sNF)}, 5'); k(f's_movk_i32 {s(sMG)}, 206')
        k(f's_branch {LD_}')
        k.label(LD_ + 'w1')
        k(f's_sub_u32 {s(u)}, {s(u)}, 800')
        srd(k, SRC, 32, F_*D_*2)
        k(f's_mov_b32 {s(sCBS)}, {20*7*1024}'); k(f's_mov_b32 {s(sBase)}, {WS_W1}')
        k(f's_mul_i32 {s(m)}, {s(u)}, 607'); k(f's_lshr_b32 {s(m)}, {s(m)}, 14')
        k(f's_mul_i32 {s(sC)}, {s(m)}, 27'); k(f's_sub_u32 {s(sC)}, {s(u)}, {s(sC)}')
        k(f's_movk_i32 {s(sLDm)}, 3456'); k(f's_mov_b32 {s(sNF)}, 7'); k(f's_movk_i32 {s(sMG)}, 147')
        k.label(LD_)
        k(f's_and_b32 {s(sG)}, {s(m)}, 3'); k(f's_lshr_b32 {s(sS)}, {s(m)}, 2')
        k(f's_lshl_b32 {s(sT[11])}, {s(sS)}, 5'); k(f's_lshl_b32 {s(sT[12])}, {s(sG)}, 2')
        k(f's_add_u32 {s(sT[11])}, {s(sT[11])}, {s(sT[12])}')
        k(f'v_lshrrev_b32 {v(vT[0])}, 5, {v(vL)}'); k(f'v_bfe_u32 {v(vT[1])}, {v(vL)}, 3, 2')
        k(f'v_lshl_add_u32 {v(vT[0])}, {v(vT[0])}, 4, {v(vT[1])}')
        k(f'v_add_u32 {v(vT[0])}, {s(sT[11])}, {v(vT[0])}')
        k(f'v_mul_lo_u32 {v(vT[0])}, {v(vT[0])}, {s(sLDm)}')
        k(f'v_and_b32 {v(vT[1])}, 7, {v(vL)}'); k(f'v_lshl_add_u32 {v(vT[0])}, {v(vT[1])}, 4, {v(vT[0])}')
        k(f's_lshl_b32 {s(sT[11])}, {s(sC)}, 7')
        k(f'v_add_u32 {v(vRS)}, {s(sT[11])}, {v(vT[0])}')
        k(f's_lshl_b32 {s(sT[11])}, {s(sC)}, 2')
        k(f'v_lshrrev_b32 {v(vT[0])}, 4, {v(vL)}'); k(f'v_add_u32 {v(vT[0])}, {s(sT[11])}, {v(vT[0])}')
        k(f'v_mul_u32_u24 {v(vT[1])}, {s(sMG)}, {v(vT[0])}'); k(f'v_lshrrev_b32 {v(vT[1])}, 10, {v(vT[1])}')
        k(f'v_mul_u32_u24 {v(vT[2])}, {s(sNF)}, {v(vT[1])}'); k(f'v_sub_u32 {v(vT[0])}, {v(vT[0])}, {v(vT[2])}')
        k(f'v_mul_lo_u32 {v(vT[1])}, {v(vT[1])}, {s(sCBS)}')
        k(f'v_lshl_add_u32 {v(vT[0])}, {v(vT[0])}, 10, {v(vT[1])}')
        k(f'v_and_b32 {v(vT[1])}, 15, {v(vL)}'); k(f'v_lshl_add_u32 {v(vT[0])}, {v(vT[1])}, 4, {v(vT[0])}')
        k(f's_mul_i32 {s(sT[11])}, {s(sS)}, {s(sNF)}'); k(f's_lshl_b32 {s(sT[11])}, {s(sT[11])}, 10')
        k(f's_lshl_b32 {s(sT[12])}, {s(sG)}, 8'); k(f's_add_u32 {s(sT[11])}, {s(sT[11])}, {s(sT[12])}')
        k(f's_add_u32 {s(sT[11])}, {s(sT[11])}, {s(sBase)}')
        if r == 2:
            k(f's_cmp_ge_u32 {s(sW_)}, 4'); k(f's_cselect_b32 {s(sT[11])}, 0x7f000000, {s(sT[11])}')
        k(f'v_add_u32 {v(vRD)}, {s(sT[11])}, {v(vT[0])}')
        k(f's_lshl_b32 {s(sT[11])}, {s(sW_)}, 10'); k(f's_add_u32 m0, {s(sT[11])}, {SCR}')
        ld(('R', r), f'buffer_load_dwordx4 {v(vRS)}, {s(SRC,4)}, 0 offen lds')
    def rp_finish(r, nout):
        wait_for({('R', r)})
        k(f'v_bfe_u32 {v(vT[0])}, {v(vL)}, 2, 2'); k(f'v_lshlrev_b32 {v(vT[0])}, 7, {v(vT[0])}')
        k(f'v_lshrrev_b32 {v(vT[1])}, 4, {v(vL)}'); k(f'v_lshl_add_u32 {v(vT[0])}, {v(vT[1])}, 5, {v(vT[0])}')
        k(f'v_and_b32 {v(vT[1])}, 3, {v(vL)}'); k(f'v_lshl_add_u32 {v(vT[0])}, {v(vT[1])}, 3, {v(vT[0])}')
        k(f's_lshl_b32 {s(sT[11])}, {s(sW_)}, 10'); k(f's_add_u32 {s(sT[11])}, {s(sT[11])}, {SCR}')
        k(f'v_add_u32 {v(vT[0])}, {s(sT[11])}, {v(vT[0])}')
        k(f'ds_read_b64_tr_b16 {v(RP,2)}, {v(vT[0])}')
        k(f'ds_read_b64_tr_b16 {v(RP+2,2)}, {v(vT[0])} offset:512')
        k('s_waitcnt lgkmcnt(0)')
        ld(('RS', r), f'buffer_store_dwordx4 {v(RP,4)}, {v(vRD)}, {s(SWS,4)}, 0 offen')

    CH = [0, 2, 10, 18]
    def chunk_hi(t):
        nxt = [c for c in CH if c > t]
        return (nxt[0] if nxt else 32) - 1
    wait_for(needs(chunk_hi(0))); k('s_barrier')
    rK(0); rV(0, 0)
    m2b(S[0], 0, '0')
    k('s_waitcnt lgkmcnt(1)')
    qk(S[0], 0); qk(S[0], 1)
    rK(1)
    for h in range(2): rowmax(S[0] + 16*h, vM[h], vT[h])
    for h in range(2): halfmax(vM[h], vT[h])
    for h in range(2):
        for i in range(16):
            k(f'v_sub_f32 {v(C+16*h+i)}, 0, {v(vM[h])}')
            k(f'v_sub_f32 {v(S[0]+16*h+i)}, {v(S[0]+16*h+i)}, {v(vM[h])}')
    k('s_waitcnt lgkmcnt(0)')
    for i in range(32):
        X, Y = S[i % 2], S[(i+1) % 2]
        last = (i == 31)
        if i in CH and i > 0:
            wait_for(needs(chunk_hi(i))); k('s_barrier')
        if repack:
            if i == 19: rp_setup(0)
            if i == 23: rp_finish(0, 0); rp_setup(1)
            if i == 27: rp_finish(1, 0); rp_setup(2)
            if i == 31: rp_finish(2, 0)
        if not last: m2b(Y, i+1, v(C, 32))
        G(X, 0); G(X, 1)
        pv(1, 1); rV(i, 1)
        G(X, 2)
        k('s_waitcnt lgkmcnt(1)')
        pv(0, 0)
        G(X, 3)
        if not last: qk(Y, 0)
        G(X, 4)
        k('s_waitcnt lgkmcnt(0)')
        pv(0, 1)
        G(X, 5)
        if not last: qk(Y, 1)
        if i + 2 < 32: rK(i+2)
        G(X, 6)
        pv(1, 0)
        if not last: rV(i+1, 0)
        G(X, 7)
    pv(1, 1)
    Lslow, Lep = 'L_k2_slow', 'L_k2_ep'
    for h in range(2):
        k(f'v_add_f32 {v(vT[h])}, abs({v(O+16*h)}), abs({v(O+16*h+1)})')
        for i in range(2, 12): k(f'v_add_f32 {v(vT[h])}, {v(vT[h])}, abs({v(O+16*h+i)})')
    k(f'v_add_f32 {v(vT[0])}, {v(vT[0])}, {v(vT[1])}')
    k(f'v_max_f32 {v(vT[2])}, {v(O+8)}, {v(O+24)}')
    k(f'v_min_f32 {v(vT[3])}, {v(O+8)}, {v(O+24)}')
    k(f's_mov_b32 {s(sT[0])}, {f32(2.0**120)}'); k(f's_mov_b32 {s(sT[1])}, {f32(2.0**60)}'); k(f's_mov_b32 {s(sT[2])}, {f32(2.0**-20)}')
    k(f'v_cmp_nlt_f32 vcc, {v(vT[0])}, {s(sT[0])}')
    k(f'v_cmp_nlt_f32 {s(sT[4],2)}, {v(vT[2])}, {s(sT[1])}')
    k(f'v_cmp_ngt_f32 {s(sT[6],2)}, {v(vT[3])}, {s(sT[2])}')
    k(f's_or_b32 {s(sT[5])}, {s(sT[5])}, {s(sT[7])}')
    k(f's_or_b32 {s(sT[5])}, {s(sT[5])}, vcc_hi')
    k(f's_or_b32 {s(sT[5])}, {s(sT[5])}, vcc_lo')
    k(f's_cmp_lg_u32 {s(sT[5])}, 0'); k(f's_cbranch_scc1 {Lslow}')
    k.label(Lep)
    k(f's_lshl_b32 {s(sT[0])}, {s(sQP)}, 12'); k(f's_lshl_b32 {s(sT[1])}, {s(sKH)}, 15')
    k(f's_add_u32 {s(sT[0])}, {s(sT[0])}, {s(sT[1])}')
    k(f's_xor_b32 {s(sT[1])}, {s(sT[0])}, 32768')
    k(f'v_add_u32 {v(vT[0])}, {s(sT[0])}, {v(vL16)}')
    k(f'v_add_u32 {v(vT[1])}, {s(sT[1])}, {v(vL16)}')
    LB, LJ = 'L_k2_epB', 'L_k2_epJ'
    k(f's_cmp_eq_u32 {s(sKH)}, 1'); k(f's_cbranch_scc1 {LB}')
    X = S[0]
    for mine in range(2):
        oth = 1 - mine
        if mine == 1: k.label(LB)
        for j in range(3): k(f'ds_write_b128 {v(vT[0])}, {v(O+16*oth+4*j,4)} offset:{j*1024}')
        k(f'ds_write_b32 {v(vT[0])}, {v(vM[oth])} offset:3072')
        k('s_waitcnt lgkmcnt(0)'); k('s_barrier')
        k(f'ds_read_b32 {v(vT[2])}, {v(vT[1])} offset:3072')
        for j in range(3): k(f'ds_read_b128 {v(X+4*j,4)}, {v(vT[1])} offset:{j*1024}')
        k('s_waitcnt lgkmcnt(3)')
        k(f'v_max_f32 {v(vT[3])}, {v(vM[mine])}, {v(vT[2])}')
        k(f'v_sub_f32 {v(vT[4])}, {v(vM[mine])}, {v(vT[3])}'); k(f'v_sub_f32 {v(vT[5])}, {v(vT[2])}, {v(vT[3])}')
        k(f'v_exp_f32 {v(vT[4])}, {v(vT[4])}'); k(f'v_exp_f32 {v(vT[5])}, {v(vT[5])}')
        k('s_waitcnt lgkmcnt(0)')
        for i in range(12):
            k(f'v_mul_f32 {v(X+i)}, {v(vT[5])}, {v(X+i)}')
            k(f'v_fma_f32 {v(X+i)}, {v(O+16*mine+i)}, {v(vT[4])}, {v(X+i)}')
        if mine == 0: k(f's_branch {LJ}')
    k.label(LJ)
    k(f'v_mov_b32 {v(vT[2])}, {v(X+8)}'); k(f'v_mov_b32 {v(vT[3])}, {v(X+8)}')
    k(f'v_permlane32_swap_b32 {v(vT[2])}, {v(vT[3])}')
    k(f'v_rcp_f32 {v(vT[3])}, {v(vT[3])}')
    for i in range(12): k(f'v_mul_f32 {v(X+i)}, {v(vT[3])}, {v(X+i)}')
    for gam in range(3):
        r = X + 4*gam
        k(f'v_cvt_pk_bf16_f32 {v(r)}, {v(r)}, {v(r+1)}'); k(f'v_cvt_pk_bf16_f32 {v(r+1)}, {v(r+2)}, {v(r+3)}')
        k(f'buffer_store_dwordx2 {v(r,2)}, {v(vOA[gam])}, {s(SWS,4)}, 0 offen')
    k.label(Lend)
    k('s_endpgm')
    k.label(Lslow)
    k.drain()
    sI, sKo, sVo, sK2o = sT[0], sT[1], sT[2], sT[3]
    X = S[0]
    def s_tile():
        k(f's_lshl_b32 {s(sKo)}, {s(sI)}, 10'); k(f's_add_u32 {s(sKo)}, {s(sKo)}, {WS_KV}')
        k(f'buffer_load_dwordx4 {v(K1,4)}, {v(vKA)}, {s(SWS,4)}, {s(sKo)} offen')
        k(f's_lshl_b32 {s(sT[4])}, {s(sKH)}, 5'); k(f's_add_u32 {s(sT[4])}, {s(sT[4])}, {s(sI)}')
        k(f's_lshr_b32 {s(sK2o)}, {s(sT[4])}, 2'); k(f's_lshl_b32 {s(sK2o)}, {s(sK2o)}, 10')
        k(f's_and_b32 {s(sT[5])}, {s(sT[4])}, 1'); k(f's_lshl_b32 {s(sT[5])}, {s(sT[5])}, 9'); k(f's_add_u32 {s(sK2o)}, {s(sK2o)}, {s(sT[5])}')
        k(f's_and_b32 {s(sT[5])}, {s(sT[4])}, 2'); k(f's_lshl_b32 {s(sT[5])}, {s(sT[5])}, 2'); k(f's_add_u32 {s(sK2o)}, {s(sK2o)}, {s(sT[5])}')
        k(f's_add_u32 {s(sK2o)}, {s(sK2o)}, {WS_K2}')
        k(f'buffer_load_dwordx2 {v(K2,2)}, {v(vT[7])}, {s(SWS,4)}, {s(sK2o)} offen')
        k(f's_mul_i32 {s(sVo)}, {s(sI)}, 1344'); k(f's_add_u32 {s(sVo)}, {s(sVo)}, {WS_KV}')
        k(f'buffer_load_dwordx4 {v(V1,4)}, {v(vVA)}, {s(SWS,4)}, {s(sVo)} offen')
        k(f'buffer_load_dwordx4 {v(V2,4)}, {v(vVA)}, {s(SWS,4)}, {s(sVo)} offen offset:672')
        k('s_waitcnt vmcnt(0)')
        k(f'v_mfma_f32_32x32x4_2b_bf16 {v(X,32)}, {v(K2,2)}, {v(Q2,2)}, 0 cbsz:1 abid:0')
        qk(X, 0); qk(X, 1)
    k(f'v_and_b32 {v(vT[7])}, 31, {v(vL)}'); k(f'v_lshlrev_b32 {v(vT[7])}, 4, {v(vT[7])}')
    for h in range(2): k(f'v_mov_b32 {v(vM[h])}, 0xff800000')
    k(f's_mov_b32 {s(sI)}, 0')
    k.label('L_k2_slow1')
    s_tile()
    for h in range(2):
        rowmax(X + 16*h, vT[h], None)
        k(f'v_max_f32 {v(vM[h])}, {v(vM[h])}, {v(vT[h])}')
    k(f's_add_u32 {s(sI)}, {s(sI)}, 1'); k(f's_cmp_lt_u32 {s(sI)}, 32'); k('s_cbranch_scc1 L_k2_slow1')
    for h in range(2): halfmax(vM[h], vT[h])
    for i in range(32): k(f'v_mov_b32 {v(O+i)}, 0')
    k(f's_mov_b32 {s(sI)}, 0')
    k.label('L_k2_slow2')
    s_tile()
    for h in range(2):
        for i in range(16): k(f'v_sub_f32 {v(X+16*h+i)}, {v(X+16*h+i)}, {v(vM[h])}')
    for g in range(8): G(X, g)
    pv(0, 0); pv(0, 1); pv(1, 0); pv(1, 1)
    k.drain()
    k(f's_add_u32 {s(sI)}, {s(sI)}, 1'); k(f's_cmp_lt_u32 {s(sI)}, 32'); k('s_cbranch_scc1 L_k2_slow2')
    k(f's_branch {Lep}')
    return k, dict(grid=256, block=512, lds=163840)
```

```python
from common import *

def gen_k35(which):
    is3 = which == 3
    k = Kern('k3_oproj_kernel' if is3 else 'k5_mlp2_kernel')
    NS = 20 if is3 else 54
    PW = 5 if is3 else 14
    DEPTH = 5 if is3 else 7
    ACT, WIM = (WS_O, WS_WO) if is3 else (WS_HH, WS_W2)
    SA, SB, SR, SOUT, SBI = 4, 8, 12, 16, 28
    sW_, sRB, sCB, sRHO = 20, 21, 22, 23
    sT = [40 + i for i in range(8)]
    sOA = [48 + i for i in range(14)]; sOB = [62 + i for i in range(14)]
    va = Alloc(1, 256)
    vL16, vL16b = va(), va()
    RING = [va(36, 4) for _ in range(DEPTH if is3 else 6)]
    vT = [va() for _ in range(10)]
    RES = [va(2) for _ in range(5)]
    BIA = [va(2) for _ in range(5)] if not is3 else None
    def acc(f, t): return (f * 4 + t) * 4
    def ringreg(slot, i):
        if slot < len(RING): return v(RING[slot] + 4*i, 4)
        return a_(80 + 4*i, 4)
    Lend = f'L_k{which}_end'
    k(f's_cmp_ge_u32 s2, 256'); k(f's_cbranch_scc1 {Lend}')
    k(f's_load_dwordx2 s[36:37], s[0:1], {A_WS}')
    if is3: k(f's_load_dwordx2 s[34:35], s[0:1], {A_X}')
    else: k(f's_load_dwordx4 s[32:35], s[0:1], {A_B2}')
    k(f'v_lshrrev_b32 {v(vT[0])}, 6, v0')
    k(f'v_and_b32 {v(vT[1])}, 63, v0')
    k(f'v_readfirstlane_b32 {s(sW_)}, {v(vT[0])}')
    k(f'v_lshlrev_b32 {v(vL16)}, 4, {v(vT[1])}')
    k(f'v_add_u32 {v(vL16b)}, 4096, {v(vL16)}')
    k(f's_and_b32 {s(sRB)}, s2, 7'); k(f's_lshl_b32 {s(sRB)}, {s(sRB)}, 2')
    k(f's_lshr_b32 {s(sT[0])}, s2, 6'); k(f's_add_u32 {s(sRB)}, {s(sRB)}, {s(sT[0])}')
    k(f's_lshr_b32 {s(sCB)}, s2, 3'); k(f's_and_b32 {s(sCB)}, {s(sCB)}, 7')
    if is3:
        k(f's_add_u32 {s(sRHO)}, {s(sRB)}, {s(sCB)}')
        k(f's_mul_i32 {s(sT[0])}, {s(sRHO)}, 13'); k(f's_lshr_b32 {s(sT[0])}, {s(sT[0])}, 6')
        k(f's_mul_i32 {s(sT[0])}, {s(sT[0])}, 5'); k(f's_sub_u32 {s(sRHO)}, {s(sRHO)}, {s(sT[0])}')
    else:
        k(f's_lshl_b32 {s(sRHO)}, {s(sRB)}, 1'); k(f's_add_u32 {s(sRHO)}, {s(sRHO)}, {s(sCB)}')
        k(f's_and_b32 {s(sRHO)}, {s(sRHO)}, 7'); k(f's_mul_i32 {s(sRHO)}, {s(sRHO)}, 7'); k(f's_lshr_b32 {s(sRHO)}, {s(sRHO)}, 2')
    k(f's_mul_i32 {s(sT[1])}, {s(sW_)}, {PW}')
    for i in range(PW):
        k(f's_add_u32 {s(sT[0])}, {s(sRHO)}, {i}'); k(f's_sub_u32 {s(sT[2])}, {s(sT[0])}, {PW}')
        k(f's_cmp_ge_u32 {s(sT[0])}, {PW}'); k(f's_cselect_b32 {s(sT[0])}, {s(sT[2])}, {s(sT[0])}')
        k(f's_add_u32 {s(sT[0])}, {s(sT[0])}, {s(sT[1])}')
        k(f's_lshl_b32 {s(sOA[i])}, {s(sT[0])}, 12')
        k(f's_mul_i32 {s(sOB[i])}, {s(sT[0])}, 5120')
    k(f's_mul_i32 {s(sT[0])}, {s(sRB)}, {NS*4096}'); k(f's_add_u32 {s(sT[0])}, {s(sT[0])}, {ACT}')
    k(f's_mul_i32 {s(sT[1])}, {s(sCB)}, {NS*5120}'); k(f's_add_u32 {s(sT[1])}, {s(sT[1])}, {WIM}')
    k('s_waitcnt lgkmcnt(0)')
    k(f's_add_u32 {s(SA)}, s36, {s(sT[0])}'); k(f's_addc_u32 {s(SA+1)}, s37, 0')
    k(f's_mov_b32 {s(SA+2)}, {NS*4096}'); k(f's_mov_b32 {s(SA+3)}, 0x00020000')
    k(f's_add_u32 {s(SB)}, s36, {s(sT[1])}'); k(f's_addc_u32 {s(SB+1)}, s37, 0')
    k(f's_mov_b32 {s(SB+2)}, {NS*5120}'); k(f's_mov_b32 {s(SB+3)}, 0x00020000')
    def issue(i):
        slot = i % DEPTH
        for t in range(4):
            k(f'buffer_load_dwordx4 {ringreg(slot, t)}, {v(vL16)}, {s(SA,4)}, {s(sOA[i])} offen offset:{t*1024}')
        for f in range(5):
            if f < 4: k(f'buffer_load_dwordx4 {ringreg(slot, 4+f)}, {v(vL16)}, {s(SB,4)}, {s(sOB[i])} offen offset:{f*1024}')
            else: k(f'buffer_load_dwordx4 {ringreg(slot, 4+f)}, {v(vL16b)}, {s(SB,4)}, {s(sOB[i])} offen')
    vt_, vg_, vRow, vImg = vT[2], vT[3], vT[4], vT[5]
    srd(k, SR, 36, WS_END)
    if is3: srd(k, SOUT, 34, S_*D_*2)
    else:
        srd(k, SOUT, 34, S_*D_*2)
        srd(k, SBI, 32, D_*2)
    def addr_setup():
        k(f'v_and_b32 {v(vt_)}, 15, {v(vT[1])}'); k(f'v_lshrrev_b32 {v(vg_)}, 4, {v(vT[1])}')
        k(f's_lshl_b32 {s(sT[0])}, {s(sRB)}, 2'); k(f's_add_u32 {s(sT[0])}, {s(sT[0])}, {s(sW_)}')
        k(f's_mul_i32 {s(sT[1])}, {s(sT[0])}, {16*1280}'); k(f's_mul_i32 {s(sT[2])}, {s(sCB)}, 160')
        k(f's_add_u32 {s(sT[1])}, {s(sT[1])}, {s(sT[2])}')
        k(f'v_mul_u32_u24 {v(vRow)}, 1280, {v(vt_)}'); k(f'v_lshl_add_u32 {v(vRow)}, {v(vg_)}, 3, {v(vRow)}')
        k(f'v_add_u32 {v(vRow)}, {s(sT[1])}, {v(vRow)}')
        k(f's_mul_i32 {s(sT[1])}, {s(sRB)}, {20*4096}'); k(f's_lshl_b32 {s(sT[2])}, {s(sW_)}, 10')
        k(f's_add_u32 {s(sT[1])}, {s(sT[1])}, {s(sT[2])}'); k(f's_add_u32 {s(sT[1])}, {s(sT[1])}, {WS_H}')
        k(f's_mul_i32 {s(sT[2])}, {s(sCB)}, 5')
        for f in range(5):
            k(f's_add_u32 {s(sT[3])}, {s(sT[2])}, {f}')
            k(f's_lshr_b32 {s(sT[4])}, {s(sT[3])}, 1'); k(f's_lshl_b32 {s(sT[4])}, {s(sT[4])}, 12')
            k(f's_and_b32 {s(sT[3])}, {s(sT[3])}, 1'); k(f's_lshl_b32 {s(sT[3])}, {s(sT[3])}, 3')
            k(f's_add_u32 {s(sT[4])}, {s(sT[4])}, {s(sT[3])}'); k(f's_add_u32 {s(76+f)}, {s(sT[4])}, {s(sT[1])}')
    def res_loads():
        for f in range(5):
            if is3: k(f'buffer_load_dwordx2 {v(RES[f],2)}, {v(vRow)}, {s(SOUT,4)}, 0 offen offset:{f*32}')
            else: k(f'buffer_load_dwordx2 {v(RES[f],2)}, {v(vL16)}, {s(SR,4)}, {s(76+f)} offen')
        if not is3:
            k(f's_mul_i32 {s(sT[2])}, {s(sCB)}, 160')
            k(f'v_lshlrev_b32 {v(vT[6])}, 3, {v(vg_)}')
            for f in range(5): k(f'buffer_load_dwordx2 {v(BIA[f],2)}, {v(vT[6])}, {s(SBI,4)}, {s(sT[2])} offen offset:{f*32}')
    NRES = 5 if is3 else 10
    for i in range(DEPTH): issue(i)
    addr_setup()
    if is3: res_loads()
    outstanding_extra = NRES if is3 else 0
    res_done = is3
    for i in range(PW):
        issued = min(PW, i + DEPTH)
        n = (issued - i - 1) * 9 + (NRES if res_done else 0)
        k(f's_waitcnt vmcnt({n})')
        slot = i % DEPTH
        for f in range(5):
            for t in range(4):
                c = '0' if i == 0 else a_(acc(f, t), 4)
                k(f'v_mfma_f32_16x16x32_bf16 {a_(acc(f,t),4)}, {ringreg(slot, 4+f)}, {ringreg(slot, t)}, {c}')
        if i + DEPTH < PW: issue(i + DEPTH)
        elif not res_done and (PW - i - 1) * 9 + NRES <= 63:
            res_loads(); res_done = True
    k(f's_mul_i32 {s(sT[0])}, {s(sW_)}, {5*1024}')
    k(f'v_add_u32 {v(vT[6])}, {s(sT[0])}, {v(vL16)}')
    k(f'v_add_u32 {v(vT[7])}, 40960, {v(vT[6])}')
    for t in range(4):
        for f in range(5):
            base = vT[6] if t < 2 else vT[7]
            k(f'ds_write_b128 {v(base)}, {a_(acc(f,t),4)} offset:{(t%2)*20480 + f*1024}')
    k('s_waitcnt lgkmcnt(0)'); k('s_barrier')
    k(f's_mul_i32 {s(sT[0])}, {s(sW_)}, 20480')
    k(f'v_add_u32 {v(vT[6])}, {s(sT[0])}, {v(vL16)}')
    R = RING[0]
    for f in range(5):
        for src in range(4):
            k(f'ds_read_b128 {v(R + (f*4+src)*4, 4)}, {v(vT[6])} offset:{src*5120 + f*1024}')
            if f == 3 and src == 2: k('s_waitcnt lgkmcnt(11)')
    k('s_waitcnt vmcnt(0)')
    SUM, SQ = vT[8], vT[9]
    for f in range(5):
        k(f's_waitcnt lgkmcnt({min(15, (4-f)*4)})')
        r = R + f*16
        for hlf in range(2):
            k(f'v_pk_add_f32 {v(r+2*hlf,2)}, {v(r+2*hlf,2)}, {v(r+4+2*hlf,2)}')
            k(f'v_pk_add_f32 {v(r+8+2*hlf,2)}, {v(r+8+2*hlf,2)}, {v(r+12+2*hlf,2)}')
            k(f'v_pk_add_f32 {v(r+2*hlf,2)}, {v(r+2*hlf,2)}, {v(r+8+2*hlf,2)}')
        for j in range(2):
            k(f'v_lshlrev_b32 {v(r+4+2*j)}, 16, {v(RES[f]+j)}')
            k(f'v_and_b32 {v(r+5+2*j)}, 0xffff0000, {v(RES[f]+j)}')
            if not is3:
                k(f'v_lshlrev_b32 {v(r+8+2*j)}, 16, {v(BIA[f]+j)}')
                k(f'v_and_b32 {v(r+9+2*j)}, 0xffff0000, {v(BIA[f]+j)}')
        for j in range(2):
            if not is3: k(f'v_pk_add_f32 {v(r+2*j,2)}, {v(r+2*j,2)}, {v(r+8+2*j,2)}')
            k(f'v_pk_add_f32 {v(r+2*j,2)}, {v(r+2*j,2)}, {v(r+4+2*j,2)}')
        k(f'v_cvt_pk_bf16_f32 {v(r)}, {v(r)}, {v(r+1)}'); k(f'v_cvt_pk_bf16_f32 {v(r+1)}, {v(r+2)}, {v(r+3)}')
        if is3:
            k(f'buffer_store_dwordx2 {v(r,2)}, {v(vL16)}, {s(SR,4)}, {s(76+f)} offen')
            if f == 0:
                k(f'v_mov_b32 {v(vT[7])}, 0x3f803f80'); k(f'v_mov_b32 {v(SUM)}, 0'); k(f'v_mov_b32 {v(SQ)}, 0')
            for j in range(2):
                k(f'v_dot2c_f32_bf16 {v(SUM)}, {v(r+j)}, {v(vT[7])}')
                k(f'v_dot2c_f32_bf16 {v(SQ)}, {v(r+j)}, {v(r+j)}')
        else:
            k(f'buffer_store_dwordx2 {v(r,2)}, {v(vRow)}, {s(SOUT,4)}, 0 offen offset:{f*32}')
    if is3:
        assert SUM % 2 == 0 and SQ == SUM + 1
        xsum_g_multi(k, [SUM, SQ], [vT[6], vT[7]])
        k(f's_lshl_b32 {s(sT[0])}, {s(sRB)}, 2'); k(f's_add_u32 {s(sT[0])}, {s(sT[0])}, {s(sW_)}')
        k(f's_lshl_b32 {s(sT[0])}, {s(sT[0])}, 10'); k(f's_lshl_b32 {s(sT[1])}, {s(sCB)}, 3')
        k(f's_add_u32 {s(sT[0])}, {s(sT[0])}, {s(sT[1])}'); k(f's_add_u32 {s(sT[0])}, {s(sT[0])}, {WS_ST}')
        k(f'v_lshlrev_b32 {v(vT[6])}, 6, {v(vt_)}')
        k(f's_mov_b64 exec, 0xffff')
        k(f'buffer_store_dwordx2 {v(SUM,2)}, {v(vT[6])}, {s(SR,4)}, {s(sT[0])} offen')
    k.label(Lend)
    k('s_endpgm')
    return k, dict(grid=256, block=256, lds=81920)
```

```python
from common import *

def gen_k4():
    k = Kern('k4_mlp1_kernel')
    SWS, SB1, SOUT = 4, 8, 12
    sW_, sRB, sCB, sRHO = 20, 21, 22, 23
    sT = [40 + i for i in range(10)]
    sWB, sAB = 50, 51
    sP = 52
    sOH = [54 + i for i in range(7)]
    sC = [62, 64, 66]
    va = Alloc(1, 256)
    vL, vL16, vt_, vg_ = va(), va(), va(), va()
    vT = [va() for _ in range(9)]
    vLD = [va(), va(), va()]
    ACT = [va(4) for _ in range(20)]
    ACC = [va(4) for _ in range(7)]
    WF = [[va(4) for _ in range(7)] for _ in range(2)]
    ST = va(16); CSR = [va(4) for _ in range(7)]; BI = [va(2) for _ in range(7)]
    Lend = 'L_k4_end'
    k(f's_cmp_ge_u32 s2, 256'); k(f's_cbranch_scc1 {Lend}')
    k(f's_load_dwordx2 s[36:37], s[0:1], {A_WS}')
    k(f's_load_dwordx2 s[34:35], s[0:1], {A_B1}')
    k(f'v_lshrrev_b32 {v(vT[0])}, 6, v0')
    k(f'v_and_b32 {v(vL)}, 63, v0')
    k(f'v_readfirstlane_b32 {s(sW_)}, {v(vT[0])}')
    k(f'v_lshlrev_b32 {v(vL16)}, 4, {v(vL)}')
    k(f'v_and_b32 {v(vt_)}, 15, {v(vL)}'); k(f'v_lshrrev_b32 {v(vg_)}, 4, {v(vL)}')
    k(f's_and_b32 {s(sRB)}, s2, 7'); k(f's_lshl_b32 {s(sRB)}, {s(sRB)}, 1')
    k(f's_lshr_b32 {s(sT[0])}, s2, 7'); k(f's_add_u32 {s(sRB)}, {s(sRB)}, {s(sT[0])}')
    k(f's_lshr_b32 {s(sCB)}, s2, 3'); k(f's_and_b32 {s(sCB)}, {s(sCB)}, 15')
    k(f's_and_b32 {s(sRHO)}, {s(sRB)}, 1'); k(f's_mul_i32 {s(sRHO)}, {s(sRHO)}, 10')
    k(f's_and_b32 {s(sT[0])}, {s(sCB)}, 3'); k(f's_mul_i32 {s(sT[0])}, {s(sT[0])}, 5')
    k(f's_add_u32 {s(sRHO)}, {s(sRHO)}, {s(sT[0])}')
    k(f's_sub_u32 {s(sT[0])}, {s(sRHO)}, 20'); k(f's_cmp_ge_u32 {s(sRHO)}, 20'); k(f's_cselect_b32 {s(sRHO)}, {s(sT[0])}, {s(sRHO)}')
    k(f's_mul_i32 {s(sWB)}, {s(sCB)}, {140*1024}'); k(f's_add_u32 {s(sWB)}, {s(sWB)}, {WS_W1}')
    k(f's_lshl_b32 {s(sT[0])}, {s(sRB)}, 3'); k(f's_add_u32 {s(sT[0])}, {s(sT[0])}, {s(sW_)}')
    k(f's_lshr_b32 {s(sT[1])}, {s(sT[0])}, 2'); k(f's_and_b32 {s(sT[2])}, {s(sT[0])}, 3'); k(f's_lshl_b32 {s(sT[2])}, {s(sT[2])}, 10')
    k(f's_mul_i32 {s(sAB)}, {s(sT[1])}, {20*4096}'); k(f's_add_u32 {s(sAB)}, {s(sAB)}, {s(sT[2])}'); k(f's_add_u32 {s(sAB)}, {s(sAB)}, {WS_H}')
    k(f's_mul_i32 {s(sT[3])}, {s(sT[1])}, {54*4096}'); k(f's_add_u32 {s(sT[3])}, {s(sT[3])}, {s(sT[2])}'); k(f's_add_u32 {s(sT[3])}, {s(sT[3])}, {WS_HH}')
    k(f's_mul_i32 {s(sT[4])}, {s(sCB)}, 7')
    for f in range(7):
        k(f's_add_u32 {s(sT[5])}, {s(sT[4])}, {f}')
        k(f's_lshr_b32 {s(sT[6])}, {s(sT[5])}, 1'); k(f's_lshl_b32 {s(sT[6])}, {s(sT[6])}, 12')
        k(f's_and_b32 {s(sT[7])}, {s(sT[5])}, 1'); k(f's_lshl_b32 {s(sT[7])}, {s(sT[7])}, 3')
        k(f's_add_u32 {s(sT[6])}, {s(sT[6])}, {s(sT[7])}'); k(f's_add_u32 {s(sT[6])}, {s(sT[6])}, {s(sT[3])}')
        k(f's_cmp_ge_u32 {s(sT[5])}, 108'); k(f's_cselect_b32 {s(sOH[f])}, 0x7f000000, {s(sT[6])}')
    k(f's_lshl_b32 {s(sT[8])}, {s(sT[0])}, 10'); k(f's_add_u32 {s(sT[8])}, {s(sT[8])}, {WS_ST}')
    k(f's_mul_i32 {s(sP)}, {s(sRHO)}, 7'); k(f's_add_u32 {s(sP)}, {s(sP)}, {s(sW_)}')
    k(f's_lshl_b32 {s(sT[9])}, {s(sW_)}, 10')
    k('s_waitcnt lgkmcnt(0)')
    srd(k, SWS, 36, WS_END)
    srd(k, SB1, 34, F_*2)
    vm = []
    def ld(tag, text): k(text); vm.append(tag)
    def dma(r):
        k(f's_sub_u32 {s(sT[0])}, {s(sP)}, 140'); k(f's_cmp_ge_u32 {s(sP)}, 140'); k(f's_cselect_b32 {s(sP)}, {s(sT[0])}, {s(sP)}')
        k(f's_lshl_b32 {s(sT[0])}, {s(sP)}, 10'); k(f's_add_u32 {s(sT[0])}, {s(sT[0])}, {s(sWB)}')
        k(f's_add_u32 m0, {s(sT[9])}, {r*8192}')
        k(f's_add_u32 {s(sP)}, {s(sP)}, 8')
        ld(('W', r), f'buffer_load_dwordx4 {v(vL16)}, {s(SWS,4)}, {s(sT[0])} offen lds')
    def act(i):
        k(f's_lshl_b32 {s(sT[0])}, {s(sRHO)}, 12'); k(f's_add_u32 {s(sT[0])}, {s(sT[0])}, {s(sAB)}')
        ld(('A', i), f'buffer_load_dwordx4 {v(ACT[i],4)}, {v(vL16)}, {s(SWS,4)}, {s(sT[0])} offen')
        k(f's_add_u32 {s(sRHO)}, {s(sRHO)}, 1'); k(f's_cmp_eq_u32 {s(sRHO)}, 20'); k(f's_cselect_b32 {s(sRHO)}, 0, {s(sRHO)}')
    for i in range(20):
        act(i)
        if i < 18: dma(i)
    k(f'v_lshlrev_b32 {v(vT[0])}, 6, {v(vt_)}')
    for j in range(4): ld('E', f'buffer_load_dwordx4 {v(ST+4*j,4)}, {v(vT[0])}, {s(SWS,4)}, {s(sT[8])} offen offset:{j*16}')
    k(f's_mul_i32 {s(sT[1])}, {s(sCB)}, {112*4}'); k(f's_add_u32 {s(sT[1])}, {s(sT[1])}, {WS_CS1}')
    k(f's_mul_i32 {s(sT[2])}, {s(sCB)}, {112*2}')
    k(f'v_lshlrev_b32 {v(vT[1])}, 4, {v(vg_)}'); k(f'v_lshlrev_b32 {v(vT[2])}, 3, {v(vg_)}')
    for f in range(7):
        ld('E', f'buffer_load_dwordx4 {v(CSR[f],4)}, {v(vT[1])}, {s(SWS,4)}, {s(sT[1])} offen offset:{f*64}')
        ld('E', f'buffer_load_dwordx2 {v(BI[f],2)}, {v(vT[2])}, {s(SB1,4)}, {s(sT[2])} offen offset:{f*32}')
    assert len(vm) <= 63
    for j in range(3):
        if j == 0: k(f'v_mov_b32 {v(vLD[j])}, {v(vL16)}')
        else: k(f'v_add_u32 {v(vLD[j])}, {j*7*7168}, {v(vL16)}')
    def wait_for(tags):
        last = max(i for i, t in enumerate(vm) if t in tags)
        k(f's_waitcnt vmcnt({len(vm) - 1 - last})')
    def rd(i):
        for f in range(7):
            k(f'ds_read_b128 {v(WF[i%2][f],4)}, {v(vLD[i//7])} offset:{(i%7)*7168 + f*1024}')
    CH = [0, 2, 5, 8, 12, 16]
    for i in range(20):
        if i in CH:
            hi = ([c for c in CH if c > i] + [20])[0] - 1
            tags = {('A', j) for j in range(hi + 1)} | {('W', r) for r in range(min(17, (7*(hi+1) - 1)//8) + 1)}
            wait_for(tags); k('s_barrier')
            rd(i)
        nxt = (i + 1 < 20) and (i + 1 not in CH)
        if nxt: rd(i + 1)
        k(f's_waitcnt lgkmcnt({7 if nxt else 0})')
        for f in range(7):
            c = '0' if i == 0 else v(ACC[f], 4)
            k(f'v_mfma_f32_16x16x32_bf16 {v(ACC[f],4)}, {v(WF[i%2][f],4)}, {v(ACT[i],4)}, {c}')
    k('s_waitcnt vmcnt(0)')
    for j in range(4): k(f'v_pk_add_f32 {v(ST+4*j,2)}, {v(ST+4*j,2)}, {v(ST+4*j+2,2)}')
    k(f'v_pk_add_f32 {v(ST,2)}, {v(ST,2)}, {v(ST+4,2)}'); k(f'v_pk_add_f32 {v(ST+8,2)}, {v(ST+8,2)}, {v(ST+12,2)}')
    k(f'v_pk_add_f32 {v(ST,2)}, {v(ST,2)}, {v(ST+8,2)}')
    MEAN, RS = ST + 2, ST + 4
    k(f'v_mul_f32 {v(MEAN)}, {f32(1.0/D_)}, {v(ST)}')
    k(f'v_mul_f32 {v(ST+1)}, {f32(1.0/D_)}, {v(ST+1)}')
    k(f'v_fma_f32 {v(ST+1)}, -{v(MEAN)}, {v(MEAN)}, {v(ST+1)}')
    k(f'v_max_f32 {v(ST+1)}, 0, {v(ST+1)}')
    k(f'v_add_f32 {v(ST)}, {f32(1e-5)}, {v(ST+1)}')
    k(f'v_rsq_f32 {v(RS)}, {v(ST)}')
    k(f'v_mul_f32 {v(ST)}, {v(RS)}, {v(RS)}')
    k(f'v_mul_f32 {v(ST)}, {v(ST)}, {v(ST+1)}')
    k(f'v_add_f32 {v(ST)}, {f32(1e-5)}, {v(ST)}')
    k(f'v_rsq_f32 {v(ST)}, {v(ST)}')
    k(f'v_mul_f32 {v(RS)}, {v(RS)}, {v(ST)}')
    k(f'v_mov_b32 {v(MEAN+1)}, {v(MEAN)}'); k(f'v_mov_b32 {v(RS+1)}, {v(RS)}')
    c1 = 2.0 * math.sqrt(2.0 / math.pi) * math.log2(math.e)
    c2 = c1 * 0.044715
    for i, c in enumerate((-c2, -c1)):
        k(f's_mov_b32 {s(sC[i])}, {f32(c)}'); k(f's_mov_b32 {s(sC[i]+1)}, {f32(c)}')
    k(f'v_mov_b32 {v(ST+6)}, {s(sC[1])}'); k(f'v_mov_b32 {v(ST+7)}, {s(sC[1])}')
    for f in range(7):
        A = ACC[f]; B = WF[0][f]; T = WF[1][f]
        for j in range(2):
            k(f'v_lshlrev_b32 {v(B+2*j)}, 16, {v(BI[f]+j)}'); k(f'v_and_b32 {v(B+2*j+1)}, 0xffff0000, {v(BI[f]+j)}')
        for j in range(2):
            k(f'v_pk_fma_f32 {v(A+2*j,2)}, {v(MEAN,2)}, {v(CSR[f]+2*j,2)}, {v(A+2*j,2)} neg_lo:[1,0,0] neg_hi:[1,0,0]')
        for j in range(2): k(f'v_pk_fma_f32 {v(A+2*j,2)}, {v(A+2*j,2)}, {v(RS,2)}, {v(B+2*j,2)}')
        for j in range(2): k(f'v_pk_mul_f32 {v(T+2*j,2)}, {v(A+2*j,2)}, {v(A+2*j,2)}')
        for j in range(2): k(f'v_pk_fma_f32 {v(T+2*j,2)}, {v(T+2*j,2)}, {s(sC[0],2)}, {v(ST+6,2)}')
        for j in range(2): k(f'v_pk_mul_f32 {v(T+2*j,2)}, {v(T+2*j,2)}, {v(A+2*j,2)}')
        for j in range(4): k(f'v_exp_f32 {v(T+j)}, {v(T+j)}')
        for j in range(2): k(f'v_pk_add_f32 {v(T+2*j,2)}, {v(T+2*j,2)}, 1.0 op_sel_hi:[1,0]')
        for j in range(4): k(f'v_rcp_f32 {v(T+j)}, {v(T+j)}')
        for j in range(2): k(f'v_pk_mul_f32 {v(A+2*j,2)}, {v(A+2*j,2)}, {v(T+2*j,2)}')
        k(f'v_cvt_pk_bf16_f32 {v(A)}, {v(A)}, {v(A+1)}'); k(f'v_cvt_pk_bf16_f32 {v(A+1)}, {v(A+2)}, {v(A+3)}')
        k(f'buffer_store_dwordx2 {v(A,2)}, {v(vL16)}, {s(SWS,4)}, {s(sOH[f])} offen')
    k.label(Lend)
    k('s_endpgm')
    return k, dict(grid=256, block=512, lds=147456)
```

```python
import sys
from common import *
from k1 import gen_k1
from k2 import gen_k2
from k35 import gen_k35
from k4 import gen_k4
NAME = 'sequential_preLN__grouped_kv_mqa__mixer_channel_mlp__prompt'
def build(kernels, path, report=False):
    head = open(f'cdna_kernels/{NAME}.s.ref').read().split('; Override launch')[0]
    out = head
    for k, cfg in kernels:
        out += f"; @launch kernel={k.name} grid=({cfg['grid']},1,1) block=({cfg['block']},1,1) lds={cfg['lds']}\n"
    out += '.amdgcn_target "amdgcn-amd-amdhsa--gfx950"\n'
    descs = ''
    seen = set()
    for k, cfg in kernels:
        if k.name in seen: continue
        seen.add(k.name)
        t, d, regs = kernel_text(k, report)
        print(k.name, 'vgpr/agpr/sgpr', regs, 'lines', t.count('\n'))
        out += t; descs += '.p2align 6\n' + d
    out += '.section .rodata,"a"\n' + descs
    open(path, 'w').write(out)
if __name__ == '__main__':
    ks = [gen_k1(), gen_k2(), gen_k35(3), gen_k4(), gen_k35(5)]
    build(ks, sys.argv[1] if len(sys.argv) > 1 else f'cdna_kernels/{NAME}.s', report='-r' in sys.argv)
```
